```python
import torch

def _softmax(x, axis=-1):
    return torch.softmax(x, dim=axis)
def _gelu(x):
    return torch.nn.functional.gelu(x, approximate="tanh")
def _silu(x):
    return torch.nn.functional.silu(x)
def _sigmoid(x):
    return torch.sigmoid(x)
def _layernorm(x, axis=-1, eps=1e-5):
    m = x.mean(dim=axis, keepdim=True)
    v = x.var(dim=axis, keepdim=True, unbiased=False)
    return (x - m) / torch.sqrt(v + eps)
def _scatter_add(tgt, idx, src, axis=0):
    return tgt.clone().index_add_(axis, idx, src)
def _segment_sum(src, seg, n):
    out = torch.zeros((n,) + src.shape[1:], dtype=src.dtype)
    return out.index_add_(0, seg, src)
def _pad(x, pw):
    flat = tuple(v for pair in reversed(pw) for v in pair)
    return torch.nn.functional.pad(x, flat)

kernel_name = 'standalone__gqa_block_cached__decode'

def setup_inputs():

    _w = (lambda a: (lambda t: t.to(torch.bfloat16) if t.is_floating_point() else t)(torch.as_tensor(a)))
    B, Sq, D = 8, 1, 512
    Hq, Hkv, Sk, Dh = 32, 8, 4096, 128
    assert Hq % Hkv == 0, (Hq, Hkv)
    return {
        "x": _w((lambda *s: torch.randn(*s, dtype=torch.bfloat16) * 0.8)(B, Sq, D)),
        "k_cache": _w((lambda *s: torch.randn(*s, dtype=torch.bfloat16) * 0.8)(B, Hkv, Sk, Dh)),
        "v_cache": _w((lambda *s: torch.randn(*s, dtype=torch.bfloat16) * 0.05)(B, Hkv, Sk, Dh)),
        "wq": _w((lambda *s: torch.randn(*s, dtype=torch.bfloat16) * 0.8)(D, Hq * Dh) * (D ** -0.5)),
        "wo": _w((lambda *s: torch.randn(*s, dtype=torch.bfloat16) * 0.05)(Hq * Dh, D) * ((Hq * Dh) ** -0.5)),
    }

def reference(x, k_cache, v_cache, wq, wo):
    B, Sq, D = x.shape
    Hq, Dh = 32, 128
    Hkv = k_cache.shape[1]
    rep = Hq // Hkv
    q = (lambda x, *d: x.permute(*d))((x @ wq).reshape(B, Sq, Hq, Dh), 0, 2, 1, 3)
    k = (lambda x, n, axis: torch.repeat_interleave(x, n, dim=axis))(k_cache, rep, axis=1)
    v = (lambda x, n, axis: torch.repeat_interleave(x, n, dim=axis))(v_cache, rep, axis=1)
    scores = torch.einsum("bhqd,bhkd->bhqk", q, k) * (Dh ** -0.5)
    p = _softmax(scores, axis=-1)
    o = torch.einsum("bhqk,bhkd->bhqd", p, v)
    return (lambda x, *d: x.permute(*d))(o, 0, 2, 1, 3).reshape(B, Sq, Hq * Dh) @ wo
```

```python
import re
TRANS = ('v_exp_f32','v_log_f32','v_rcp_f32','v_rsq_f32','v_sqrt_f32','v_sin_f32','v_cos_f32')
def regs_of(tok):
    tok = tok.strip().lstrip('-')
    m = re.fullmatch(r'abs\((.*)\)', tok)
    if m: tok = m.group(1)
    m = re.fullmatch(r'\|(.*)\|', tok)
    if m: tok = m.group(1)
    m = re.fullmatch(r'([vsa])(\d+)', tok)
    if m: return {(m.group(1), int(m.group(2)))}
    m = re.fullmatch(r'([vsa])\[(\d+):(\d+)\]', tok)
    if m: return {(m.group(1), i) for i in range(int(m.group(2)), int(m.group(3)) + 1)}
    if tok == 'vcc': return {('s', 106), ('s', 107)}
    if tok == 'vcc_lo': return {('s', 106)}
    if tok == 'vcc_hi': return {('s', 107)}
    if tok == 'exec': return {('s', 126), ('s', 127)}
    return set()

class Ins:
    pass

def parse(line):
    I = Ins(); I.text = line
    s = line.split(';')[0].strip()
    parts = s.split(None, 1)
    op = parts[0]; I.op = op
    rest = parts[1] if len(parts) > 1 else ''
    ops = [o.strip() for o in rest.split(',')] if rest else []
    mods = ''
    if ops:
        lp = ops[-1].split(None, 1)
        ops[-1] = lp[0] if lp else ''
        mods = lp[1] if len(lp) > 1 else ''
    I.ops = ops; I.mods = mods
    I.w = set(); I.r = set(); I.cls = 'other'; I.states = 1
    I.srcA = I.srcB = I.srcC = set()
    if op == 's_nop':
        I.states = int(ops[0], 0) + 1; I.cls = 'nop'
    elif op.startswith('v_mfma'):
        I.cls = 'mfma'; I.w = regs_of(ops[0]); I.srcA = regs_of(ops[1]); I.srcB = regs_of(ops[2]); I.srcC = regs_of(ops[3])
        I.r = I.srcA | I.srcB | I.srcC
        I.passes = 8 if '32x32' in op else 4
    elif op.startswith('v_'):
        I.cls = 'valu'
        I.trans = op.split('_e')[0] in TRANS or op in TRANS
        I.dpp = 'dpp' in op or 'row_' in mods or 'quad_perm' in mods
        I.perm = op.startswith('v_permlane')
        I.rl = op.startswith('v_readfirstlane') or op.startswith('v_readlane')
        if I.perm:
            I.w = regs_of(ops[0]) | regs_of(ops[1]); I.r = set(I.w)
        else:
            I.w = regs_of(ops[0])
            k = 1
            if op.startswith('v_add_co') or op.startswith('v_addc_co') or op.startswith('v_sub_co'):
                I.w |= regs_of(ops[1]); k = 2
            for o in ops[k:]: I.r |= regs_of(o)
            if op.startswith('v_fmac') or op.startswith('v_pk_fmac') or I.dpp: I.r |= regs_of(ops[0])
            if op.startswith('v_cndmask') and len(ops) == 3: I.r |= regs_of('vcc')
    elif op.startswith('buffer_') or op.startswith('global_'):
        I.cls = 'vmem'
        I.store = 'store' in op or 'atomic' in op
        I.wide = ('x3' in op or 'x4' in op)
        if op.startswith('buffer_'):
            if 'lds' in mods.split():
                for o in ops: I.r |= regs_of(o)
                I.data = set()
            elif I.store:
                I.data = regs_of(ops[0])
                for o in ops: I.r |= regs_of(o)
            else:
                I.w = regs_of(ops[0]); I.data = set()
                for o in ops[1:]: I.r |= regs_of(o)
        else:
            if I.store:
                I.data = regs_of(ops[1])
                for o in ops: I.r |= regs_of(o)
            else:
                I.w = regs_of(ops[0]); I.data = set()
                for o in ops[1:]: I.r |= regs_of(o)
    elif op.startswith('ds_'):
        I.cls = 'ds'
        if 'read' in op or 'permute' in op or 'swizzle' in op:
            I.w = regs_of(ops[0])
            for o in ops[1:]: I.r |= regs_of(o)
            if 'd16' in op: I.r |= regs_of(ops[0])
        else:
            for o in ops: I.r |= regs_of(o)
    elif op.startswith('s_'):
        I.cls = 'salu'
        if op.startswith('s_cmp') or op.startswith('s_cbranch') or op in ('s_branch','s_barrier','s_waitcnt','s_sleep','s_endpgm','s_setprio'):
            for o in ops: I.r |= regs_of(o)
        else:
            if ops: I.w = regs_of(ops[0])
            for o in ops[1:]: I.r |= regs_of(o)
    return I

def need(p, c):
    n = 0
    vw = {x for x in p.w if x[0] in 'va'}
    sw = {x for x in p.w if x[0] == 's'}
    if p.cls == 'valu':
        if c.cls == 'mfma' and vw & c.r: n = max(n, 2)
        if p.trans and c.cls == 'valu' and not c.trans and vw & (c.r | c.w): n = max(n, 1)
        if p.trans and c.cls in ('vmem', 'ds') and vw & c.r: n = max(n, 1)
        if c.cls == 'valu' and sw & c.r: n = max(n, 4 if c.rl and False else 2)
        if c.cls == 'vmem' and sw & c.r: n = max(n, 5)
        if c.cls == 'salu' and sw & c.r: n = max(n, 1)
        if c.cls == 'valu' and c.rl and vw & c.r: n = max(n, 1)
        if c.cls == 'valu' and (c.perm or c.dpp) and vw & c.r: n = max(n, 2)
    if p.cls == 'mfma':
        big = {4: 8, 8: 12}[p.passes]
        if c.cls == 'valu' and vw & (c.r | c.w): n = max(n, big)
        if c.cls in ('vmem', 'ds') and vw & (c.r | c.w): n = max(n, big)
        if c.cls == 'mfma':
            if vw & (c.srcA | c.srcB): n = max(n, big)
            if vw & c.srcC and c.srcC != p.w: n = max(n, big - 2)
            if vw & c.srcC and c.srcC == p.w and c.op != p.op: n = max(n, big - 2)
            if vw & c.w and not (vw & c.srcC): n = max(n, big)
        if c.cls == 'valu' and p.srcC & c.w: n = max(n, {4: 3, 8: 7}[p.passes])
    if p.cls == 'vmem' and p.store and p.wide:
        if c.cls == 'valu' and p.data & c.w: n = max(n, 2)
        elif p.data & c.w: n = max(n, 1)
    return n

class Asm:
    def __init__(self):
        self.lines = []; self.hist = []; self.vq = []; self.nops = 0
    def raw(self, s): self.lines.append(s)
    def label(self, name, pad=True):
        self.lines.append(name + ':')
        if pad:
            self.hist = []
            self.e('s_nop 7'); self.e('s_nop 3')
    def e(self, text):
        for line in text.strip().split('\n'):
            line = line.strip()
            if not line or line.startswith(';'):
                continue
            I = parse(line)
            dist = 0; req = 0
            for p in reversed(self.hist):
                r = need(p, I) - dist
                if r > req: req = r
                dist += p.states
                if dist >= 16: break
            while req > 0:
                k = min(req, 16)
                N = parse(f's_nop {k-1}'); self.lines.append('  ' + N.text); self.hist.append(N); self.nops += 1
                req -= k
            self.lines.append('  ' + line); self.hist.append(I)
            if len(self.hist) > 40: self.hist = self.hist[-40:]
            if I.cls == 'vmem':
                self.vq.append(object())
    def vm_mark(self):
        return len(self.vq)
    def vm_wait(self, mark):
        n = len(self.vq) - mark
        assert n >= 0
        if n <= 63: self.e(f's_waitcnt vmcnt({n})')
    def vm_pace(self, N):
        self.e(f's_waitcnt vmcnt({N-1})')
    def text(self): return '\n'.join(self.lines) + '\n'
```

```python
import sys, struct, math, os
from asmlib import Asm
def f32(x): return struct.unpack('<I', struct.pack('<f', x))[0]

class Cfg:
    NI = 4
    N = 4
    N0 = 12
    N2 = 4
    MIMIC = 1
    STAMPS = 0
    NT = 'nt'
    WNT = 'nt'
    NAME = 'standalone__gqa_block_cached__decode_kernel'
    SPIN = 200000
    SLP0 = 2
    SLP1 = 2
    SLP2 = 2

QRAW = 0
PART1 = 1 << 20
MLG = (1 << 20) + (1 << 19)
INBOX2 = 2 << 20
EPOCH = 3 << 20
STAMP = 128 << 20
L_QP = 0
L_ACC = 0
L_WO = 32768
L_QS = 49408
L_ML = 50432
L_BX = 50688
L_WOF = 52736
LDS_BYTES = 52736 + 16384

SX, SK, SV, SWQ, SWO, SOUT, SDBG, SWS = ['s[%d:%d]' % (b, b + 3) for b in (32, 36, 40, 44, 48, 52, 56, 60)]
def sT(t): return '0' if t == 0 else 's%d' % (64 + t)

def gen(c):
    a = Asm(); e = a.e
    nm = c.NAME
    def stamp(k):
        if c.STAMPS: e(f's_memrealtime s[{76+2*k}:{77+2*k}]')
    def exec_if_wave(cmp, val, lo='-1', hi='-1'):
        e(f's_cmp_{cmp}_u32 s3, {val}')
        e(f's_cselect_b32 exec_lo, {lo}, 0')
        e(f's_cselect_b32 exec_hi, {hi}, 0')
    a.raw(f'.globl {nm}\n.p2align 8\n.type {nm},@function\n{nm}:')
    e('s_cmp_ge_u32 s2, 256')
    e('s_cbranch_scc1 L_end')
    e('s_load_dwordx16 s[16:31], s[0:1], 0')
    stamp(0)
    e('v_lshrrev_b32 v1, 6, v0')
    e('v_readfirstlane_b32 s3, v1')
    e('v_and_b32 v1, 63, v0')
    e('v_lshrrev_b32 v2, 4, v1')
    e('v_and_b32 v3, 15, v1')
    e('s_and_b32 s4, s2, 7')
    e('s_lshr_b32 s5, s2, 3')
    e('s_lshr_b32 s6, s5, 2')
    e('s_and_b32 s7, s5, 3')
    e('s_lshr_b32 s8, s5, 3')
    e('s_and_b32 s9, s5, 7')
    e('s_lshl_b32 s10, s4, 2')
    e('s_add_u32 s10, s10, s8')
    for t in range(1, 9): e(f's_mov_b32 s{64+t}, {t*4096}')
    e('s_lshl_b32 s11, s8, 7')
    e('s_lshl_b32 s12, s3, 4')
    e('s_add_u32 s11, s11, s12')
    e('s_lshl_b32 s12, s11, 13')
    e('s_lshl_b32 s13, s4, 10')
    e('s_add_u32 s12, s12, s13')
    e('s_lshl_b32 s13, s9, 7')
    e('s_add_u32 s12, s12, s13')
    e('v_lshrrev_b32 v8, 3, v3')
    e('v_lshl_add_u32 v8, v2, 2, v8')
    e('v_lshlrev_b32 v8, 13, v8')
    e('v_and_b32 v9, 7, v3')
    e('v_lshl_add_u32 v8, v9, 4, v8')
    e('v_add_u32 v8, s12, v8')
    e('v_lshrrev_b32 v9, 2, v3')
    e('v_lshlrev_b32 v9, 10, v9')
    e('v_lshl_add_u32 v9, v2, 3, v9')
    e('s_lshl_b32 s13, s11, 1')
    e('v_add_u32 v9, s13, v9')
    e('s_lshl_b32 s13, s6, 5')
    e('s_lshl_b32 s14, s4, 2')
    e('s_add_u32 s13, s13, s14')
    e('s_add_u32 s13, s13, s7')
    e('s_lshl_b32 s13, s13, 18')
    e('s_lshl_b32 s14, s3, 15')
    e('s_add_u32 s13, s13, s14')
    e('v_and_b32 v4, 3, v3')
    e('v_lshrrev_b32 v5, 2, v3')
    e('v_lshl_add_u32 v4, v4, 2, v5')
    e('v_lshlrev_b32 v4, 8, v4')
    e('v_lshl_add_u32 v4, v2, 4, v4')
    e('v_add_u32 v4, s13, v4')
    e('v_lshlrev_b32 v5, 4, v1')
    e('v_add_u32 v5, s13, v5')
    e('s_waitcnt lgkmcnt(0)')
    def srd(base, p, size):
        e(f's_mov_b32 s{base}, s{p}')
        e(f's_and_b32 s{base+1}, s{p+1}, 0xffff')
        e(f's_mov_b32 s{base+2}, {size}')
        e(f's_mov_b32 s{base+3}, 0x20000')
    srd(44, 22, 4 << 20); srd(32, 16, 8192)
    e(f'buffer_load_dwordx4 v[64:67], v8, {SWQ}, 0 offen {c.WNT}')
    e(f'buffer_load_dwordx4 v[68:71], v8, {SWQ}, {sT(4)} offen {c.WNT}')
    e(f'buffer_load_dwordx2 v[72:73], v9, {SX}, 0 offen')
    e(f'buffer_load_dwordx2 v[74:75], v9, {SX}, {sT(1)} offen')
    mk_wq = a.vm_mark()
    srd(36, 18, 64 << 20)
    e(f's_add_u32 s14, s30, {EPOCH}')
    e('s_addc_u32 s15, s31, 0')
    e('s_load_dwordx2 s[74:75], s[14:15], 0')
    marks = {}
    issued = [0]
    def swait(idx):
        n = issued[0] - (idx + 1)
        assert n >= 0
        e(f's_waitcnt vmcnt({min(n,63)})')
    def kreg(t, kk): return 128 + 16 * t + 4 * kk
    def vreg(t, rr): return (64 + 16 * t + 4 * rr) if t < 4 else (128 + 16 * (t - 4) + 4 * rr)
    def issue(idx):
        if idx < 32:
            t, kk = idx // 4, idx % 4; r = kreg(t, kk)
            e(f'buffer_load_dwordx4 v[{r}:{r+3}], v4, {SK}, {sT(t)} offen offset:{kk*64} {c.NT}')
        else:
            t, rr = (idx - 32) // 4, idx % 4; r = vreg(t, rr)
            e(f'buffer_load_dwordx4 v[{r}:{r+3}], v5, {SV}, {sT(t)} offen offset:{rr*1024} {c.NT}')
        marks[idx] = a.vm_mark()
        issued[0] = idx + 1
    for idx in range(c.NI): issue(idx)
    srd(48, 24, 4 << 20); srd(40, 20, 64 << 20); srd(52, 26, 8192); srd(56, 28, 256); srd(60, 30, 256 << 20)
    e('v_and_b32 v14, 1, v1')
    e('v_lshlrev_b32 v14, 4, v14')
    e('v_mov_b32 v15, 0xffff')
    e('v_lshlrev_b32 v15, v14, v15')
    e('v_and_b32 v14, 3, v1')
    e('v_cmp_gt_u32 vcc, 2, v14')
    e('v_cndmask_b32 v6, 0, v15, vcc')
    e('v_xor_b32 v7, v15, v6')
    e('s_and_b32 s15, s3, 3')
    e('s_lshl_b32 s13, s10, 7')
    e('s_lshl_b32 s14, s15, 5')
    e('s_add_u32 s13, s13, s14')
    e('s_lshl_b32 s13, s13, 10')
    e('s_lshl_b32 s14, s9, 7')
    e('s_add_u32 s13, s13, s14')
    e('v_lshrrev_b32 v10, 3, v1')
    e('v_and_b32 v11, 7, v1')
    e('v_lshlrev_b32 v12, 10, v10')
    e('v_lshl_add_u32 v12, v11, 4, v12')
    e('v_add_u32 v12, s13, v12')
    e('s_mul_i32 s13, s15, 4128')
    e(f's_add_u32 s13, s13, {L_WO}')
    e('v_lshlrev_b32 v13, 4, v1')
    e('v_add_u32 v13, s13, v13')
    e('v_mov_b32 v14, 0x0c0c0c0c')
    e('s_mov_b32 s13, 0x01000100')
    e('s_mov_b32 s14, 0x03020302')
    e('v_bfi_b32 v84, v6, s13, v14')
    e('v_bfi_b32 v85, v7, s13, v14')
    e('v_bfi_b32 v86, v6, s14, v14')
    e('v_bfi_b32 v87, v7, s14, v14')
    e('s_mov_b32 vcc_lo, 0')
    e('s_mov_b32 vcc_hi, -1')
    e('s_lshl_b32 s13, s3, 12')
    e('v_lshlrev_b32 v14, 4, v1')
    e('v_add_u32 v14, s13, v14')
    a.vm_wait(mk_wq)
    def dq(bg, aa, half): return 96 + ((bg * 2 + aa) * 2 + half) * 4
    k = 0
    for t in range(2):
        for bg in range(2):
            for aa in range(2):
                bt = 88 + 2 * (k % 4); k += 1
                xw = 72 + 2 * bg + t
                e(f'v_perm_b32 v{bt}, v{xw}, v{xw}, v{84+2*aa}')
                e(f'v_perm_b32 v{bt+1}, v{xw}, v{xw}, v{85+2*aa}')
                for half in range(2):
                    d = dq(bg, aa, half); A0 = 64 + 4 * t + 2 * half
                    cc = '0' if t == 0 else f'v[{d}:{d+3}]'
                    e(f'v_mfma_f32_16x16x16_bf16 v[{d}:{d+3}], v[{A0}:{A0+1}], v[{bt}:{bt+1}], {cc}')
    for bg in range(2):
        for half in range(2):
            d0 = dq(bg, 0, half); d1 = dq(bg, 1, half)
            for r in range(4): e(f'v_cndmask_b32 v{d0+r}, v{d0+r}, v{d1+r}, vcc')
            e(f'ds_write_b128 v14, v[{d0}:{d0+3}] offset:{L_QP + (bg*2+half)*1024}')
    e('s_waitcnt lgkmcnt(0)')
    e('s_barrier')
    stamp(1)
    e('s_add_u32 s74, s74, 1')
    e('s_add_u32 s75, s75, 0x9E3779B9')
    def addr_p1(vd, vm, vt, alpha_sgpr):
        e(f'v_lshrrev_b32 {vt}, 5, v1')
        e(f'v_lshlrev_b32 {vd}, 14, {vt}')
        e(f'v_lshlrev_b32 {vm}, 10, {vt}')
        e(f'v_bfe_u32 {vt}, v1, 3, 2')
        e(f'v_lshl_add_u32 {vd}, {vt}, 10, {vd}')
        e(f'v_lshl_add_u32 {vm}, {vt}, 8, {vm}')
        e(f'v_and_b32 {vt}, 7, v1')
        e(f'v_lshl_add_u32 {vd}, {vt}, 4, {vd}')
        e('s_lshl_b32 s13, s4, 16')
        e('s_lshl_b32 s14, s7, 12')
        e('s_add_u32 s13, s13, s14')
        e('s_lshl_b32 s14, s6, 7')
        e('s_add_u32 s13, s13, s14')
        e(f's_add_u32 s13, s13, {PART1}')
        if alpha_sgpr:
            e(f's_lshl_b32 s14, {alpha_sgpr}, 15')
            e('s_add_u32 s13, s13, s14')
        e(f'v_add_u32 {vd}, s13, {vd}')
        e('s_lshl_b32 s13, s4, 12')
        e('s_lshl_b32 s14, s6, 5')
        e('s_add_u32 s13, s13, s14')
        e('s_lshl_b32 s14, s7, 3')
        e('s_add_u32 s13, s13, s14')
        e(f's_add_u32 s13, s13, {MLG}')
        if alpha_sgpr:
            e(f's_lshl_b32 s14, {alpha_sgpr}, 11')
            e('s_add_u32 s13, s13, s14')
        e(f'v_add_u32 {vm}, s13, {vm}')
    def addr_inbox(vd):
        e('s_lshl_b32 s13, s2, 11')
        e(f's_add_u32 s13, s13, {INBOX2}')
        e(f'v_lshlrev_b32 {vd}, 4, v1')
        e(f'v_add_u32 {vd}, s13, {vd}')
    e('s_cmp_lg_u32 s3, 0')
    e('s_cbranch_scc1 L_others')
    saved_vq = list(a.vq)
    e('v_lshlrev_b32 v14, 4, v1')
    for pr in range(2):
        for half in range(2):
            for w in range(8):
                r = 64 + (half * 8 + w) * 4
                e(f'ds_read_b128 v[{r}:{r+3}], v14 offset:{L_QP + w*4096 + (pr*2+half)*1024}')
        if pr == 0:
            e('s_lshl_b32 s13, s4, 17')
            e('s_lshl_b32 s14, s5, 9')
            e('s_add_u32 s13, s13, s14')
            if QRAW: e(f's_add_u32 s13, s13, {QRAW}')
            e('v_bfe_u32 v10, v1, 2, 2')
            e('v_lshlrev_b32 v10, 14, v10')
            e('v_lshl_add_u32 v10, v2, 6, v10')
            e('v_and_b32 v15, 3, v1')
            e('v_lshl_add_u32 v10, v15, 4, v10')
            e('v_add_u32 v10, s13, v10')
            e('v_add_u32 v11, 0x10000, v10')
        e('s_waitcnt lgkmcnt(0)')
        for half in range(2):
            dst = 32 + half * 4
            b0 = 64 + half * 32
            for r in range(4):
                e(f'v_add_f32 v{dst+r}, v{b0+r}, v{b0+4+r}')
            for w in range(2, 8):
                for r in range(4):
                    e(f'v_add_f32 v{dst+r}, v{dst+r}, v{b0+4*w+r}')
        for r in range(4): e(f'v_permlane32_swap_b32 v{32+r}, v{36+r}')
        ga = 40 + pr * 8
        e(f'v_add_f32 v{ga}, v32, v36')
        e(f'v_add_f32 v{ga+1}, v33, v37')
        e(f'v_mov_b32 v{ga+2}, s74')
        e(f'v_mov_b32 v{ga+3}, s75')
        e(f'v_add_f32 v{ga+4}, v34, v38')
        e(f'v_add_f32 v{ga+5}, v35, v39')
        e(f'v_mov_b32 v{ga+6}, s74')
        e(f'v_mov_b32 v{ga+7}, s75')
        va = 'v10' if pr == 0 else 'v11'
        e(f'buffer_store_dwordx4 v[{ga}:{ga+3}], {va}, {SWS}, 0 offen sc1')
        e(f'buffer_store_dwordx4 v[{ga+4}:{ga+7}], {va}, {SWS}, 0 offen offset:256 sc1')
    stamp(2)
    e('s_lshl_b32 s13, s4, 3')
    e('s_add_u32 s13, s13, s6')
    e('s_lshl_b32 s13, s13, 14')
    if QRAW: e(f's_add_u32 s13, s13, {QRAW}')
    e('v_lshlrev_b32 v14, 9, v2')
    e('v_lshl_add_u32 v14, v3, 4, v14')
    e('v_add_u32 v14, s13, v14')
    e('v_lshlrev_b32 v15, 7, v2')
    e('v_bfe_u32 v10, v1, 2, 1')
    e('v_lshl_add_u32 v15, v10, 6, v15')
    e('v_bfe_u32 v10, v1, 3, 1')
    e('v_lshl_add_u32 v15, v10, 3, v15')
    e('v_and_b32 v10, 3, v1')
    e('v_lshl_add_u32 v15, v10, 1, v15')
    e(f's_mov_b32 s73, {c.SPIN}')
    a.label('L_poll0', pad=False)
    for n in range(8):
        for ab in range(2):
            r = 64 + 8 * n + 4 * ab
            e(f'buffer_load_dwordx4 v[{r}:{r+3}], v14, {SWS}, {sT(n//2)} offen offset:{(n%2)*2048 + ab*256} sc1')
    e('v_mov_b32 v10, 0')
    for j in range(16):
        r = 64 + 4 * j
        e(f's_waitcnt vmcnt({15-j})')
        e(f'v_xor_b32 v{r+2}, s74, v{r+2}')
        e(f'v_xor_b32 v{r+3}, s75, v{r+3}')
        e(f'v_or3_b32 v10, v10, v{r+2}, v{r+3}')
    e('v_cmp_eq_u32 vcc, 0, v10')
    e('s_cmp_eq_u64 vcc, exec')
    e('s_cbranch_scc1 L_poll0_done')
    e(f's_sleep {c.SLP0}')
    e('s_sub_u32 s73, s73, 1')
    e('s_cmp_lg_u32 s73, 0')
    e('s_cbranch_scc1 L_poll0')
    a.label('L_poll0_done', pad=False)
    stamp(3)
    for uu in range(2):
        d = 32 + 4 * uu
        def qv(n, rr): return 64 + 8 * n + (rr >> 1) * 4 + (rr & 1)
        for r in range(4): e(f'v_add_f32 v{d+r}, v{qv(uu,r)}, v{qv(2+uu,r)}')
        for r in range(4): e(f'v_add_f32 v{d+r}, v{d+r}, v{qv(4+uu,r)}')
        for r in range(4): e(f'v_add_f32 v{d+r}, v{d+r}, v{qv(6+uu,r)}')
        e(f'v_cvt_pk_bf16_f32 v{40+2*uu}, v{d}, v{d+1}')
        e(f'v_cvt_pk_bf16_f32 v{41+2*uu}, v{d+2}, v{d+3}')
        o = L_QS + uu * 512
        e(f'ds_write_b16 v15, v{40+2*uu} offset:{o}')
        e(f'ds_write_b16_d16_hi v15, v{40+2*uu} offset:{o+16}')
        e(f'ds_write_b16 v15, v{41+2*uu} offset:{o+32}')
        e(f'ds_write_b16_d16_hi v15, v{41+2*uu} offset:{o+48}')
    e('s_waitcnt lgkmcnt(0)')
    e('s_barrier')
    stamp(4)
    FCHK = min(47, c.NI + c.N0 + 8)
    e('v_lshlrev_b32 v14, 2, v1')
    e('s_mov_b32 s13, 0x01010101')
    for idx in range(c.NI, 48):
        if idx - c.NI >= c.N0: a.vm_pace(c.N0)
        issue(idx)
        if idx == c.NI + 3:
            e(f'buffer_load_dword v15, v14, {SDBG}, 0 offen sc1')
            mk_fl = a.vm_mark()
        if idx == FCHK:
            a.vm_wait(mk_fl)
            e('v_cmp_eq_u32 vcc, s13, v15')
            e('s_cmp_eq_u64 vcc, exec')
            e('s_cbranch_scc1 L_flags_ok')
            e(f's_mov_b32 s73, {c.SPIN}')
            a.label('L_pollf', pad=False)
            e('s_sleep 20')
            e(f'buffer_load_dword v15, v14, {SDBG}, 0 offen sc1')
            e('s_waitcnt vmcnt(0)')
            e('v_cmp_eq_u32 vcc, s13, v15')
            e('s_cmp_eq_u64 vcc, exec')
            e('s_cbranch_scc1 L_flags_ok')
            e('s_sub_u32 s73, s73, 1')
            e('s_cmp_lg_u32 s73, 0')
            e('s_cbranch_scc1 L_pollf')
            a.label('L_flags_ok', pad=False)
    e('s_branch L_main')
    a.vq = saved_vq
    a.label('L_others', pad=False)
    addr_p1('v48', 'v49', 'v50', None)
    addr_inbox('v51')
    for r in range(4): e(f'v_mov_b32 v{52+r}, -1')
    e('v_mov_b32 v56, 1')
    e('v_mov_b32 v57, s2')
    exec_if_wave('eq', 1)
    e(f'buffer_store_dwordx4 v[52:55], v48, {SWS}, 0 offen sc1')
    e(f'buffer_store_dwordx4 v[52:55], v48, {SWS}, {sT(8)} offen sc1')
    e(f'buffer_store_dwordx4 v[52:55], v51, {SWS}, 0 offen sc1')
    e(f'buffer_store_dwordx4 v[52:55], v51, {SWS}, 0 offen offset:1024 sc1')
    e('s_mov_b32 s13, 0x01010101')
    exec_if_wave('eq', 1, 's13', 's13')
    e(f'buffer_store_dwordx2 v[52:53], v49, {SWS}, 0 offen sc1')
    e(f'buffer_store_dwordx2 v[52:53], v49, {SWS}, 0 offen offset:2048 sc1')
    mk_clr = a.vm_mark()
    e('s_mov_b64 exec, -1')
    for idx in range(c.NI, 48):
        a.vm_pace(c.N)
        issue(idx)
        if idx == c.NI + c.N:
            a.vm_wait(mk_clr)
            exec_if_wave('eq', 1, '1', '0')
            e(f'buffer_store_byte v56, v57, {SDBG}, 0 offen sc1')
            e('s_mov_b64 exec, -1')
        if idx == 31:
            exec_if_wave('ge', 4)
            for t in range(4):
                e(f'buffer_load_dwordx4 v[{32+4*t}:{35+4*t}], v12, {SWO}, {sT(2*t)} offen {c.WNT}')
            mk_wo = a.vm_mark()
            e('s_mov_b64 exec, -1')
    a.vm_wait(mk_wo)
    exec_if_wave('ge', 4)
    for t in range(4): e(f'ds_write_b128 v13, v[{32+4*t}:{35+4*t}] offset:{1024*t}')
    e('s_mov_b64 exec, -1')
    e('s_waitcnt lgkmcnt(0)')
    e('s_barrier')
    a.label('L_main', pad=False)
    e('v_lshrrev_b32 v14, 2, v3')
    e('v_lshlrev_b32 v14, 8, v14')
    e('v_lshl_add_u32 v14, v2, 4, v14')
    for kk in range(4):
        e(f'ds_read_b128 v[{16+4*kk}:{19+4*kk}], v14 offset:{L_QS + kk*64}')
    e('s_waitcnt lgkmcnt(0)')
    def qk(t):
        swait(4 * t + 3)
        s = 32 + 4 * t
        for kk in range(4):
            r = kreg(t, kk)
            cc = '0' if kk == 0 else f'v[{s}:{s+3}]'
            e(f'v_mfma_f32_16x16x32_bf16 v[{s}:{s+3}], v[{r}:{r+3}], v[{16+4*kk}:{19+4*kk}], {cc}')
    for t in range(4): qk(t)
    for t in range(4, 8):
        for j in range(4):
            a.vm_pace(c.N2)
            issue(32 + 4 * t + j)
        qk(t)
    scale = 128 ** -0.5; log2e = math.log2(math.e)
    if c.MIMIC:
        e(f's_mov_b32 s13, {f32(scale):#x}')
        e('s_mov_b32 s14, 0xffff0000')
        for p in range(16):
            x0 = 32 + 2 * p; x1 = x0 + 1; tt = 8 + (p % 4)
            e(f'v_cvt_pk_bf16_f32 v{tt}, v{x0}, v{x1}')
            e(f'v_lshlrev_b32 v{x0}, 16, v{tt}')
            e(f'v_and_b32 v{x1}, s14, v{tt}')
            e(f'v_mul_f32 v{x0}, s13, v{x0}')
            e(f'v_mul_f32 v{x1}, s13, v{x1}')
            e(f'v_cvt_pk_bf16_f32 v{tt}, v{x0}, v{x1}')
            e(f'v_lshlrev_b32 v{x0}, 16, v{tt}')
            e(f'v_and_b32 v{x1}, s14, v{tt}')
        cexp = log2e
    else:
        cexp = scale * log2e
    e(f's_mov_b32 s15, {f32(cexp):#x}')
    e('v_max3_f32 v8, v32, v33, v34')
    e('v_max3_f32 v9, v35, v36, v37')
    for k2 in range(38, 62, 4):
        e(f'v_max3_f32 v8, v8, v{k2}, v{k2+1}')
        e(f'v_max3_f32 v9, v9, v{k2+2}, v{k2+3}')
    e('v_max3_f32 v8, v8, v62, v63')
    e('v_max_f32 v8, v8, v9')
    e('v_mov_b32 v9, v8')
    e('v_permlane32_swap_b32 v8, v9')
    e('v_max_f32 v8, v8, v9')
    e('v_mov_b32 v9, v8')
    e('v_permlane16_swap_b32 v8, v9')
    e('v_max_f32 v8, v8, v9')
    e('v_mul_f32 v8, s15, v8')
    e('v_sub_f32 v10, 0, v8')
    e('v_mov_b32 v9, 0')
    e('v_mov_b32 v11, 0')
    for idx in range(32):
        s = 32 + idx
        e(f'v_fma_f32 v{s}, v{s}, s15, v10')
        e(f'v_exp_f32 v{s}, v{s}')
    for idx in range(32):
        s = 32 + idx; pb = 192 + 2 * idx
        la = 9 if idx % 2 == 0 else 11
        e(f'v_add_f32 v{la}, v{la}, v{s}')
        e(f'v_cvt_pk_bf16_f32 v{s}, v{s}, v{s}')
        e(f'v_and_b32 v{pb}, v6, v{s}')
        e(f'v_and_b32 v{pb+1}, v7, v{s}')
    e('v_add_f32 v9, v9, v11')
    e('v_mov_b32 v11, v9')
    e('v_permlane32_swap_b32 v9, v11')
    e('v_add_f32 v9, v9, v11')
    e('v_mov_b32 v11, v9')
    e('v_permlane16_swap_b32 v9, v11')
    e('v_add_f32 v9, v9, v11')
    stamp(5)
    e('s_lshl_b32 s13, s3, 11')
    e('v_lshlrev_b32 v29, 4, v1')
    e('v_add_u32 v16, s13, v29')
    e('s_lshl_b32 s13, s3, 3')
    e('v_add_u32 v17, s13, v29')
    e('s_mov_b32 exec_lo, 0x1111')
    e('s_mov_b32 exec_hi, 0')
    e(f'ds_write_b64 v17, v[8:9] offset:{L_ML}')
    e('s_mov_b64 exec, -1')
    e('s_cmp_lt_u32 s3, 4')
    e('s_cbranch_scc1 L_prep03')
    e('v_mul_u32_u24 v10, 4128, v2')
    e('v_lshl_add_u32 v10, v3, 1, v10')
    e('s_and_b32 s14, s3, 3')
    e('s_lshl_b32 s13, s14, 5')
    e('v_add_u32 v10, s13, v10')
    for kk in range(4):
        for half in range(2):
            for r in range(4):
                e(f'ds_read_u16 v{32 + (kk*2+half)*4 + r}, v10 offset:{L_WO + (8*r + 4*half + kk)*128}')
    e('s_lshl_b32 s13, s14, 12')
    e('v_add_u32 v11, s13, v29')
    e('s_waitcnt lgkmcnt(0)')
    for n in range(16): e(f'v_lshl_or_b32 v{32+n}, v{33+2*n}, 16, v{32+2*n}')
    for q4 in range(4): e(f'ds_write_b128 v11, v[{32+4*q4}:{35+4*q4}] offset:{L_WOF + 1024*q4}')
    e('s_branch L_pv')
    a.label('L_prep03', pad=False)
    e('v_and_b32 v18, 1, v1')
    e('v_lshlrev_b32 v18, 10, v18')
    e('v_bfe_u32 v10, v1, 1, 2')
    e('v_lshl_add_u32 v18, v10, 8, v18')
    e('v_bfe_u32 v10, v1, 3, 2')
    e('v_lshl_add_u32 v18, v10, 4, v18')
    e('v_lshrrev_b32 v10, 5, v1')
    e('s_lshl_b32 s13, s3, 1')
    e('v_add_u32 v10, s13, v10')
    e('v_lshl_add_u32 v18, v10, 6, v18')
    e('v_lshlrev_b32 v19, 6, v10')
    addr_p1('v20', 'v21', 'v10', 's3')
    e('v_and_b32 v10, 7, v1')
    e('v_lshlrev_b32 v22, 7, v10')
    e('v_lshl_add_u32 v22, v2, 5, v22')
    e('v_bfe_u32 v11, v1, 3, 1')
    e('v_lshl_add_u32 v22, v11, 4, v22')
    e('s_lshl_b32 s13, s10, 14')
    e('s_lshl_b32 s14, s3, 10')
    e('s_add_u32 s13, s13, s14')
    e(f's_add_u32 s13, s13, {PART1}')
    e('v_add_u32 v22, s13, v22')
    e('s_lshl_b32 s13, s10, 10')
    e('s_lshl_b32 s14, s3, 8')
    e('s_add_u32 s13, s13, s14')
    e(f's_add_u32 s13, s13, {MLG}')
    e('v_lshlrev_b32 v23, 5, v10')
    e('v_add_u32 v23, s13, v23')
    e('v_lshlrev_b32 v25, 3, v1')
    e('s_lshl_b32 s13, s3, 9')
    e('v_add_u32 v24, s13, v25')
    e('v_lshlrev_b32 v26, 16, v10')
    e('v_lshl_add_u32 v26, v2, 4, v26')
    e('s_lshl_b32 s13, s9, 2')
    e('s_add_u32 s13, s13, s3')
    e('s_lshl_b32 s13, s13, 11')
    e('s_lshl_b32 s14, s10, 6')
    e('s_add_u32 s13, s13, s14')
    e(f's_add_u32 s13, s13, {INBOX2}')
    e('v_add_u32 v26, s13, v26')
    addr_inbox('v27')
    e('s_lshl_b32 s13, s2, 5')
    e('v_lshlrev_b32 v28, 3, v1')
    e('v_add_u32 v28, s13, v28')
    e('s_lshl_b32 s13, s3, 12')
    e('v_add_u32 v30, s13, v29')
    a.label('L_pv', pad=False)
    def wreg(kk, half): return 32 + (kk * 2 + half) * 2
    first = True
    for t in range(8):
        for rr in range(4):
            swait(32 + 4 * t + rr)
            vr = vreg(t, rr); pb = 192 + 2 * (4 * t + rr)
            for half in range(2):
                d = 48 + 4 * half
                cc = '0' if first else f'v[{d}:{d+3}]'
                e(f'v_mfma_f32_16x16x16_bf16 v[{d}:{d+3}], v[{vr+2*half}:{vr+2*half+1}], v[{pb}:{pb+1}], {cc}')
            first = False
    stamp(6)
    e(f'ds_write_b128 v16, v[48:51] offset:{L_ACC}')
    e(f'ds_write_b128 v16, v[52:55] offset:{L_ACC+1024}')
    e('s_waitcnt lgkmcnt(0)')
    e('s_barrier')
    e('s_cmp_ge_u32 s3, 4')
    e('s_cbranch_scc1 L_end')
    e('s_cmp_ge_u32 s3, 2')
    e('s_cbranch_scc1 L_stageC')
    for j in range(4): e(f'ds_read_b128 v[{64+4*j}:{67+4*j}], v19 offset:{L_ML + 16*j}')
    for w in range(8): e(f'ds_read_b128 v[{80+4*w}:{83+4*w}], v18 offset:{L_ACC + w*2048}')
    e('s_waitcnt lgkmcnt(8)')
    e('v_max3_f32 v8, v64, v66, v68')
    e('v_max3_f32 v9, v70, v72, v74')
    e('v_max3_f32 v8, v8, v76, v78')
    e('v_max_f32 v8, v8, v9')
    for w in range(8): e(f'v_sub_f32 v{64+2*w}, v{64+2*w}, v8')
    for w in range(8): e(f'v_exp_f32 v{64+2*w}, v{64+2*w}')
    e('v_mul_f32 v9, v64, v65')
    for w in range(1, 8): e(f'v_fmac_f32 v9, v{64+2*w}, v{65+2*w}')
    e('s_waitcnt lgkmcnt(0)')
    for r in range(4): e(f'v_mul_f32 v{56+r}, v64, v{80+r}')
    for w in range(1, 8):
        for r in range(4): e(f'v_fmac_f32 v{56+r}, v{64+2*w}, v{80+4*w+r}')
    for r in range(4): e(f'v_min_u32 v{56+r}, -2, v{56+r}')
    e('v_min_u32 v8, -2, v8')
    e('v_min_u32 v9, -2, v9')
    e(f'buffer_store_dwordx4 v[56:59], v20, {SWS}, 0 offen sc1')
    e('s_mov_b32 exec_lo, 0x01010101')
    e('s_mov_b32 exec_hi, 0x01010101')
    e(f'buffer_store_dwordx2 v[8:9], v21, {SWS}, 0 offen sc1')
    e('s_mov_b64 exec, -1')
    stamp(7)
    a.label('L_stageC', pad=False)
    for q4 in range(4): e(f'ds_read_b128 v[{32+4*q4}:{35+4*q4}], v30 offset:{L_WOF + 1024*q4}')
    e(f's_mov_b32 s73, {c.SPIN}')
    a.label('L_poll1', pad=False)
    for s in range(4): e(f'buffer_load_dwordx4 v[{64+4*s}:{67+4*s}], v22, {SWS}, {sT(s)} offen sc1')
    e(f'buffer_load_dwordx4 v[80:83], v23, {SWS}, 0 offen sc1')
    e(f'buffer_load_dwordx4 v[84:87], v23, {SWS}, 0 offen offset:16 sc1')
    e('s_waitcnt vmcnt(0)')
    e('v_max3_u32 v8, v64, v65, v66')
    e('v_max3_u32 v9, v67, v68, v69')
    for k2 in range(70, 86, 4):
        e(f'v_max3_u32 v8, v8, v{k2}, v{k2+1}')
        e(f'v_max3_u32 v9, v9, v{k2+2}, v{k2+3}')
    e('v_max3_u32 v8, v8, v86, v87')
    e('v_max_u32 v8, v8, v9')
    e('v_cmp_ne_u32 vcc, -1, v8')
    e('s_cmp_eq_u64 vcc, exec')
    e('s_cbranch_scc1 L_poll1_done')
    e(f's_sleep {c.SLP1}')
    e('s_sub_u32 s73, s73, 1')
    e('s_cmp_lg_u32 s73, 0')
    e('s_cbranch_scc1 L_poll1')
    a.label('L_poll1_done', pad=False)
    stamp(8)
    e('v_max3_f32 v8, v80, v82, v84')
    e('v_max_f32 v8, v8, v86')
    for s in range(4): e(f'v_sub_f32 v{80+2*s}, v{80+2*s}, v8')
    for s in range(4): e(f'v_exp_f32 v{80+2*s}, v{80+2*s}')
    e('v_mul_f32 v9, v80, v81')
    for s in range(1, 4): e(f'v_fmac_f32 v9, v{80+2*s}, v{81+2*s}')
    e('v_rcp_f32 v9, v9')
    for r in range(4): e(f'v_mul_f32 v{56+r}, v80, v{64+r}')
    for s in range(1, 4):
        for r in range(4): e(f'v_fmac_f32 v{56+r}, v{80+2*s}, v{64+4*s+r}')
    for r in range(4): e(f'v_mul_f32 v{56+r}, v{56+r}, v9')
    e('v_cvt_pk_bf16_f32 v60, v56, v57')
    e('v_cvt_pk_bf16_f32 v61, v58, v59')
    e(f'ds_write_b64 v24, v[60:61] offset:{L_BX}')
    e('s_waitcnt lgkmcnt(0)')
    e('s_barrier')
    for kk in range(4): e(f'ds_read_b64 v[{64+2*kk}:{65+2*kk}], v25 offset:{L_BX + kk*512}')
    e('s_waitcnt lgkmcnt(0)')
    for kk in range(4):
        for half in range(2):
            d = 48 + 4 * half; w = wreg(kk, half)
            cc = '0' if kk == 0 else f'v[{d}:{d+3}]'
            e(f'v_mfma_f32_16x16x16_bf16 v[{d}:{d+3}], v[{w}:{w+1}], v[{64+2*kk}:{65+2*kk}], {cc}')
    for r in range(4): e(f'v_add_f32_dpp v{56+r}, v{52+r}, v{48+r} row_shl:8 row_mask:0xf bank_mask:0xf bound_ctrl:0')
    for r in range(4): e(f'v_min_u32 v{56+r}, -2, v{56+r}')
    e('s_mov_b32 exec_lo, 0x00ff00ff')
    e('s_mov_b32 exec_hi, 0x00ff00ff')
    e(f'buffer_store_dwordx4 v[56:59], v26, {SWS}, 0 offen sc1')
    e('s_mov_b64 exec, -1')
    stamp(9)
    e('s_cmp_lg_u32 s3, 0')
    e('s_cbranch_scc1 L_end')
    e(f's_mov_b32 s73, {c.SPIN}')
    a.label('L_poll2', pad=False)
    e(f'buffer_load_dwordx4 v[64:67], v27, {SWS}, 0 offen sc1')
    e(f'buffer_load_dwordx4 v[68:71], v27, {SWS}, 0 offen offset:1024 sc1')
    e('s_waitcnt vmcnt(0)')
    e('v_max3_u32 v8, v64, v65, v66')
    e('v_max3_u32 v9, v67, v68, v69')
    e('v_max3_u32 v8, v8, v70, v71')
    e('v_max_u32 v8, v8, v9')
    e('v_cmp_ne_u32 vcc, -1, v8')
    e('s_cmp_eq_u64 vcc, exec')
    e('s_cbranch_scc1 L_poll2_done')
    e(f's_sleep {c.SLP2}')
    e('s_sub_u32 s73, s73, 1')
    e('s_cmp_lg_u32 s73, 0')
    e('s_cbranch_scc1 L_poll2')
    a.label('L_poll2_done', pad=False)
    stamp(10)
    for r in range(4): e(f'v_add_f32 v{64+r}, v{64+r}, v{68+r}')
    for r in range(4): e(f'v_add_f32_dpp v{68+r}, v{64+r}, v{64+r} row_ror:8 row_mask:0xf bank_mask:0xf')
    for r in range(4): e(f'v_add_f32_dpp v{64+r}, v{68+r}, v{68+r} row_ror:4 row_mask:0xf bank_mask:0xf')
    for r in range(4): e(f'v_mov_b32 v{68+r}, v{64+r}')
    for r in range(4): e(f'v_permlane16_swap_b32 v{64+r}, v{68+r}')
    for r in range(4): e(f'v_add_f32 v{64+r}, v{64+r}, v{68+r}')
    for r in range(4): e(f'v_mov_b32 v{68+r}, v{64+r}')
    for r in range(4): e(f'v_permlane32_swap_b32 v{64+r}, v{68+r}')
    for r in range(4): e(f'v_add_f32 v{64+r}, v{64+r}, v{68+r}')
    e('v_cvt_pk_bf16_f32 v60, v64, v65')
    e('v_cvt_pk_bf16_f32 v61, v66, v67')
    e('v_mov_b32 v62, s74')
    e('v_mov_b32 v63, s75')
    e(f'v_mov_b32 v8, {EPOCH}')
    e('s_mov_b32 exec_lo, 0xf')
    e('s_mov_b32 exec_hi, 0')
    e(f'buffer_store_dwordx2 v[60:61], v28, {SOUT}, 0 offen')
    e('s_cmp_eq_u32 s2, 0')
    e('s_cselect_b32 exec_lo, 1, 0')
    e(f'buffer_store_dwordx2 v[62:63], v8, {SWS}, 0 offen')
    if c.STAMPS:
        stamp(11)
        e('s_mov_b32 exec_lo, 1')
        e('s_waitcnt lgkmcnt(0)')
        e('s_lshl_b32 s13, s2, 7')
        e(f's_add_u32 s13, s13, {STAMP}')
        e('v_mov_b32 v8, s13')
        for k2 in range(6):
            for j in range(4): e(f'v_mov_b32 v{64+j}, s{76+4*k2+j}')
            e(f'buffer_store_dwordx4 v[64:67], v8, {SWS}, 0 offen offset:{16*k2}')
            e('s_nop 1')
    a.label('L_end', pad=False)
    e('s_endpgm')
    return a

HEADER = """; GQA decode (B=8,Hq=32,Hkv=8,Sk=4096,Dh=128,D=512), single launch, generated by gen.py
; @launch grid=(256,1,1) block=(512,1,1) lds=%d
.amdgcn_target "amdgcn-amd-amdhsa--gfx950"
.text
"""
def footer(nm, sg):
    return f""".section .rodata,"a"
.p2align 6
.amdhsa_kernel {nm}
  .amdhsa_next_free_vgpr 256
  .amdhsa_next_free_sgpr {sg}
  .amdhsa_accum_offset 256
  .amdhsa_group_segment_fixed_size 0
  .amdhsa_kernarg_size 64
  .amdhsa_user_sgpr_count 2
  .amdhsa_user_sgpr_kernarg_segment_ptr 1
  .amdhsa_system_sgpr_workgroup_id_x 1
.end_amdhsa_kernel
"""
if __name__ == '__main__':
    c = Cfg()
    out = sys.argv[1]
    for kv in sys.argv[2:]:
        k, v = kv.split('=')
        setattr(c, k, int(v) if v.lstrip('-').isdigit() else v)
    if c.NT == 'none': c.NT = ''
    if c.WNT == 'none': c.WNT = ''
    a = gen(c)
    open(out, 'w').write(HEADER % LDS_BYTES + a.text() + footer(c.NAME, 102))
    print('instr lines', len(a.lines), 'nops', a.nops, 'lds', LDS_BYTES)
```

```python
import sys, struct, math, os
from asmlib import Asm
def f32(x): return struct.unpack('<I', struct.pack('<f', x))[0]

class Cfg:
    NI = 4
    NI0 = 16
    X = 24
    WOI = 8
    BUD = 3
    PVR = 3
    N = 4
    N0 = 12
    N2 = 4
    MIMIC = 1
    STAMPS = 0
    NT = 'nt'
    WNT = 'nt'
    NAME = 'standalone__gqa_block_cached__decode_kernel'
    SPIN = 200000
    SLP0 = 2
    RA0 = 24
    RA1 = 24
    LST = 'none'
    SLP1 = 2
    SLP2 = 2

QRAW = 0
PART1 = 1 << 20
MLG = (1 << 20) + (1 << 19)
INBOX2 = 2 << 20
EPOCH = (3 << 20) + 4096
STAMP = 128 << 20
BOFF = 4 << 20
L_QP = 0
L_ACC = 0
L_WO = 32768
L_QS = 49408
L_ML = 50432
L_BX = 50688
L_WOF = 52736
LDS_BYTES = 52736 + 16384

SX, SK, SV, SWQ, SWO, SOUT, SDBG, SWS = ['s[%d:%d]' % (b, b + 3) for b in (32, 36, 40, 44, 48, 52, 56, 60)]
def sT(t): return '0' if t == 0 else 's%d' % (64 + t)

def gen(c):
    a = Asm(); e = a.e
    nm = c.NAME
    LEND = 'L_dump' if c.STAMPS else 'L_end'
    def stamp(k):
        if c.STAMPS: e(f's_memrealtime s[{76+2*k}:{77+2*k}]')
    def exec_if_wave(cmp, val, lo='-1', hi='-1'):
        e(f's_cmp_{cmp}_u32 s3, {val}')
        e(f's_cselect_b32 exec_lo, {lo}, 0')
        e(f's_cselect_b32 exec_hi, {hi}, 0')
    MASKS = [0, 24, 26, 28, 30, 56, 58, 14]
    def masked_poll(name, groups, kind, tmp, slp, tog=(), ra=0, hook=None):
        for gi in range(len(groups)): e(f's_mov_b64 s[{MASKS[gi]}:{MASKS[gi]+1}], -1')
        e(f's_mov_b32 s73, {c.SPIN}')
        a.label(f'L_{name}', pad=False)
        for gi, (loads, quads) in enumerate(groups):
            m = MASKS[gi]
            e(f's_mov_b64 exec, s[{m}:{m+1}]')
            e(f's_cbranch_execz L_{name}_s{gi}')
            for l in loads: e(l)
            a.label(f'L_{name}_s{gi}', pad=False)
        e('s_waitcnt vmcnt(0)')
        for gi, (loads, quads) in enumerate(groups):
            m = MASKS[gi]
            t = tmp[gi % len(tmp)]
            e(f's_mov_b64 exec, s[{m}:{m+1}]')
            if kind == 'tag':
                for q in quads:
                    e(f'v_xor_b32 v{q+2}, s74, v{q+2}')
                    e(f'v_xor_b32 v{q+3}, s75, v{q+3}')
                if len(quads) == 1:
                    e(f'v_or_b32 v{t}, v{quads[0]+2}, v{quads[0]+3}')
                else:
                    e(f'v_or3_b32 v{t}, v{quads[0]+2}, v{quads[0]+3}, v{quads[1]+2}')
                    e(f'v_or_b32 v{t}, v{t}, v{quads[1]+3}')
                e(f'v_cmp_ne_u32 s[{m}:{m+1}], 0, v{t}')
            else:
                regs = [q + r for q in quads for r in range(4)]
                e(f'v_max3_u32 v{t}, v{regs[0]}, v{regs[1]}, v{regs[2]}')
                k = 3
                while k < len(regs):
                    if k + 1 < len(regs):
                        e(f'v_max3_u32 v{t}, v{t}, v{regs[k]}, v{regs[k+1]}'); k += 2
                    else:
                        e(f'v_max_u32 v{t}, v{t}, v{regs[k]}'); k += 1
                e(f'v_cmp_eq_u32 s[{m}:{m+1}], -1, v{t}')
        e('s_mov_b64 exec, -1')
        e(f's_or_b64 vcc, s[{MASKS[0]}:{MASKS[0]+1}], s[{MASKS[1]}:{MASKS[1]+1}]')
        for gi in range(2, len(groups)): e(f's_or_b64 vcc, vcc, s[{MASKS[gi]}:{MASKS[gi]+1}]')
        e(f's_cbranch_scc0 L_{name}_done')
        e(f's_sleep {slp}')
        if hook:
            e(f's_cmp_lg_u32 s73, {c.SPIN - ra}')
            e(f's_cbranch_scc1 L_{name}_nohook')
            hook()
            a.label(f'L_{name}_nohook', pad=False)
        if tog:
            e(f's_cmp_le_u32 s73, {c.SPIN - ra}')
            e(f's_cselect_b32 s13, {BOFF}, 0')
            for v in tog: e(f'v_xor_b32 {v}, s13, {v}')
        e('s_sub_u32 s73, s73, 1')
        e('s_cmp_lg_u32 s73, 0')
        e(f's_cbranch_scc1 L_{name}')
        a.label(f'L_{name}_done', pad=False)
        if hook:
            e(f's_cmp_lt_u32 s73, {c.SPIN - ra}')
            e(f's_cbranch_scc1 L_{name}_nohook2')
            hook()
            a.label(f'L_{name}_nohook2', pad=False)
    a.raw(f'.globl {nm}\n.p2align 8\n.type {nm},@function\n{nm}:')
    e('s_cmp_ge_u32 s2, 256')
    e('s_cbranch_scc1 L_end')
    e('s_load_dwordx16 s[16:31], s[0:1], 0')
    if c.STAMPS:
        for k in range(76, 100): e(f's_mov_b32 s{k}, 0')
    stamp(0)
    e('v_lshrrev_b32 v1, 6, v0')
    e('v_readfirstlane_b32 s3, v1')
    e('v_and_b32 v1, 63, v0')
    e('v_lshrrev_b32 v2, 4, v1')
    e('v_and_b32 v3, 15, v1')
    e('s_and_b32 s4, s2, 7')
    e('s_lshr_b32 s5, s2, 3')
    e('s_lshr_b32 s6, s5, 2')
    e('s_and_b32 s7, s5, 3')
    e('s_lshr_b32 s8, s5, 3')
    e('s_and_b32 s9, s5, 7')
    e('s_lshl_b32 s10, s4, 2')
    e('s_add_u32 s10, s10, s8')
    for t in range(1, 9): e(f's_mov_b32 s{64+t}, {t*4096}')
    e('s_lshl_b32 s11, s8, 7')
    e('s_lshl_b32 s12, s3, 4')
    e('s_add_u32 s11, s11, s12')
    e('s_lshl_b32 s12, s11, 13')
    e('s_lshl_b32 s13, s4, 10')
    e('s_add_u32 s12, s12, s13')
    e('s_lshl_b32 s13, s9, 7')
    e('s_add_u32 s12, s12, s13')
    e('v_lshrrev_b32 v8, 3, v3')
    e('v_lshl_add_u32 v8, v2, 2, v8')
    e('v_lshlrev_b32 v8, 13, v8')
    e('v_and_b32 v9, 7, v3')
    e('v_lshl_add_u32 v8, v9, 4, v8')
    e('v_add_u32 v8, s12, v8')
    e('v_lshrrev_b32 v9, 2, v3')
    e('v_lshlrev_b32 v9, 10, v9')
    e('v_lshl_add_u32 v9, v2, 3, v9')
    e('s_lshl_b32 s13, s11, 1')
    e('v_add_u32 v9, s13, v9')
    e('s_lshl_b32 s13, s6, 5')
    e('s_lshl_b32 s14, s4, 2')
    e('s_add_u32 s13, s13, s14')
    e('s_add_u32 s13, s13, s7')
    e('s_lshl_b32 s13, s13, 18')
    e('s_lshl_b32 s14, s3, 12')
    e('s_add_u32 s13, s13, s14')
    e('v_and_b32 v4, 3, v3')
    e('v_bfe_u32 v5, v3, 2, 1')
    e('v_lshl_add_u32 v4, v4, 2, v5')
    e('v_lshlrev_b32 v4, 8, v4')
    e('v_lshl_add_u32 v4, v2, 4, v4')
    e('v_lshrrev_b32 v5, 3, v3')
    e('v_lshl_add_u32 v4, v5, 6, v4')
    e('v_add_u32 v4, s13, v4')
    e('v_lshlrev_b32 v5, 4, v1')
    e('v_add_u32 v5, s13, v5')
    e('s_waitcnt lgkmcnt(0)')
    def srd(base, p, size):
        e(f's_mov_b32 s{base}, s{p}')
        e(f's_and_b32 s{base+1}, s{p+1}, 0xffff')
        e(f's_mov_b32 s{base+2}, {size}')
        e(f's_mov_b32 s{base+3}, 0x20000')
    srd(44, 22, 4 << 20); srd(32, 16, 8192)
    e(f'buffer_load_dwordx4 v[64:67], v8, {SWQ}, 0 offen {c.WNT}')
    e(f'buffer_load_dwordx4 v[68:71], v8, {SWQ}, {sT(4)} offen {c.WNT}')
    e(f'buffer_load_dwordx2 v[72:73], v9, {SX}, 0 offen')
    e(f'buffer_load_dwordx2 v[74:75], v9, {SX}, {sT(1)} offen')
    mk_wq = a.vm_mark()
    srd(36, 18, 64 << 20)
    e(f's_add_u32 s14, s30, {EPOCH}')
    e('s_addc_u32 s15, s31, 0')
    e('s_load_dwordx2 s[74:75], s[14:15], 0')
    srd(48, 24, 4 << 20); srd(40, 20, 64 << 20); srd(52, 26, 8192); srd(60, 30, 256 << 20)
    for j in range(1, 8): e(f's_mov_b32 s{16+j}, {j*32768}')
    def sJ(j): return '0' if j == 0 else 's%d' % (16 + j)
    marks = {}
    issued = [0]
    def swait(idx):
        n = issued[0] - (idx + 1)
        assert n >= 0
        e(f's_waitcnt vmcnt({min(n,63)})')
    def kreg(t, kk): return 128 + 16 * t + 4 * kk
    def vreg(t, rr): return (64 + 16 * t + 4 * rr) if t < 4 else (128 + 16 * (t - 4) + 4 * rr)
    def issue(idx):
        if idx < 32:
            t, kk = idx // 4, idx % 4; r = kreg(t, kk)
            e(f'buffer_load_dwordx4 v[{r}:{r+3}], v4, {SK}, {sJ(t)} offen offset:{(kk>>1)*512 + (kk&1)*128} {c.NT}')
        else:
            t, rr = (idx - 32) // 4, idx % 4; r = vreg(t, rr)
            e(f'buffer_load_dwordx4 v[{r}:{r+3}], v5, {SV}, {sJ(t)} offen offset:{rr*1024} {c.NT}')
        marks[idx] = a.vm_mark()
        issued[0] = idx + 1
    for idx in range(c.NI): issue(idx)
    e('v_and_b32 v14, 1, v1')
    e('v_lshlrev_b32 v14, 4, v14')
    e('v_mov_b32 v15, 0xffff')
    e('v_lshlrev_b32 v15, v14, v15')
    e('v_and_b32 v14, 3, v1')
    e('v_cmp_gt_u32 vcc, 2, v14')
    e('v_cndmask_b32 v6, 0, v15, vcc')
    e('v_xor_b32 v7, v15, v6')
    e('s_and_b32 s15, s3, 3')
    e('s_lshl_b32 s13, s10, 7')
    e('s_lshl_b32 s14, s15, 5')
    e('s_add_u32 s13, s13, s14')
    e('s_lshl_b32 s13, s13, 10')
    e('s_lshl_b32 s14, s9, 7')
    e('s_add_u32 s13, s13, s14')
    e('v_lshrrev_b32 v10, 3, v1')
    e('v_and_b32 v11, 7, v1')
    e('v_lshlrev_b32 v12, 10, v10')
    e('v_lshl_add_u32 v12, v11, 4, v12')
    e('v_add_u32 v12, s13, v12')
    e('s_mul_i32 s13, s15, 4128')
    e(f's_add_u32 s13, s13, {L_WO}')
    e('v_lshlrev_b32 v13, 4, v1')
    e('v_add_u32 v13, s13, v13')
    e('v_mov_b32 v14, 0x0c0c0c0c')
    e('s_mov_b32 s13, 0x01000100')
    e('s_mov_b32 s14, 0x03020302')
    e('v_bfi_b32 v84, v6, s13, v14')
    e('v_bfi_b32 v85, v7, s13, v14')
    e('v_bfi_b32 v86, v6, s14, v14')
    e('v_bfi_b32 v87, v7, s14, v14')
    e('s_mov_b32 vcc_lo, 0')
    e('s_mov_b32 vcc_hi, -1')
    e('s_lshl_b32 s13, s3, 12')
    e('v_lshlrev_b32 v14, 4, v1')
    e('v_add_u32 v14, s13, v14')
    def addr_p1(vd, vm, vt, alpha_sgpr):
        e(f'v_lshrrev_b32 {vt}, 5, v1')
        e(f'v_lshlrev_b32 {vd}, 14, {vt}')
        e(f'v_lshlrev_b32 {vm}, 10, {vt}')
        e(f'v_bfe_u32 {vt}, v1, 3, 2')
        e(f'v_lshl_add_u32 {vd}, {vt}, 10, {vd}')
        e(f'v_lshl_add_u32 {vm}, {vt}, 8, {vm}')
        e(f'v_and_b32 {vt}, 7, v1')
        e(f'v_lshl_add_u32 {vd}, {vt}, 4, {vd}')
        e('s_lshl_b32 s13, s4, 16')
        e('s_lshl_b32 s14, s7, 12')
        e('s_add_u32 s13, s13, s14')
        e('s_lshl_b32 s14, s6, 7')
        e('s_add_u32 s13, s13, s14')
        e(f's_add_u32 s13, s13, {PART1}')
        if alpha_sgpr:
            e(f's_lshl_b32 s14, {alpha_sgpr}, 15')
            e('s_add_u32 s13, s13, s14')
        e(f'v_add_u32 {vd}, s13, {vd}')
        e('s_lshl_b32 s13, s4, 12')
        e('s_lshl_b32 s14, s6, 5')
        e('s_add_u32 s13, s13, s14')
        e('s_lshl_b32 s14, s7, 3')
        e('s_add_u32 s13, s13, s14')
        e(f's_add_u32 s13, s13, {MLG}')
        if alpha_sgpr:
            e(f's_lshl_b32 s14, {alpha_sgpr}, 11')
            e('s_add_u32 s13, s13, s14')
        e(f'v_add_u32 {vm}, s13, {vm}')
    def addr_inbox(vd):
        e('s_lshl_b32 s13, s2, 12')
        e(f's_add_u32 s13, s13, {INBOX2}')
        e(f'v_lshlrev_b32 {vd}, 4, v1')
        e(f'v_add_u32 {vd}, s13, {vd}')
    a.vm_wait(mk_wq)
    def dq(bg, aa, half): return 96 + ((bg * 2 + aa) * 2 + half) * 4
    k = 0
    for t in range(2):
        for bg in range(2):
            for aa in range(2):
                bt = 88 + 2 * (k % 4); k += 1
                xw = 72 + 2 * bg + t
                e(f'v_perm_b32 v{bt}, v{xw}, v{xw}, v{84+2*aa}')
                e(f'v_perm_b32 v{bt+1}, v{xw}, v{xw}, v{85+2*aa}')
                for half in range(2):
                    d = dq(bg, aa, half); A0 = 64 + 4 * t + 2 * half
                    cc = '0' if t == 0 else f'v[{d}:{d+3}]'
                    e(f'v_mfma_f32_16x16x16_bf16 v[{d}:{d+3}], v[{A0}:{A0+1}], v[{bt}:{bt+1}], {cc}')
    saved_vq = list(a.vq)
    e('s_cmp_lg_u32 s3, 0')
    e('s_cbranch_scc1 L_merge')
    addr_p1('v48', 'v49', 'v50', None)
    for r in range(4): e(f'v_mov_b32 v{52+r}, -1')
    e(f'v_add_u32 v50, {BOFF}, v48')
    e(f'v_add_u32 v51, {BOFF}, v49')
    for va in ('v48', 'v50'):
        e(f'buffer_store_dwordx4 v[52:55], {va}, {SWS}, 0 offen sc1')
        e(f'buffer_store_dwordx4 v[52:55], {va}, {SWS}, {sT(8)} offen sc1')
    e('s_mov_b32 exec_lo, 0x01010101')
    e('s_mov_b32 exec_hi, 0x01010101')
    for va in ('v49', 'v51'):
        e(f'buffer_store_dwordx2 v[52:53], {va}, {SWS}, 0 offen sc1')
        e(f'buffer_store_dwordx2 v[52:53], {va}, {SWS}, 0 offen offset:2048 sc1')
    mk_clr = a.vm_mark()
    e('s_mov_b64 exec, -1')
    for idx in range(c.NI, c.NI0): issue(idx)
    a.label('L_merge', pad=True)
    for bg in range(2):
        for half in range(2):
            d0 = dq(bg, 0, half); d1 = dq(bg, 1, half)
            for r in range(4): e(f'v_cndmask_b32 v{d0+r}, v{d0+r}, v{d1+r}, vcc')
            e(f'ds_write_b128 v14, v[{d0}:{d0+3}] offset:{L_QP + (bg*2+half)*1024}')
    e('s_waitcnt lgkmcnt(0)')
    e('s_barrier')
    stamp(1)
    e('s_mov_b32 s12, %d' % BOFF)
    e('s_add_u32 s74, s74, 1')
    e('s_add_u32 s75, s75, 0x9E3779B9')
    e('s_cmp_lg_u32 s3, 0')
    e('s_cbranch_scc1 L_others')
    e('v_lshlrev_b32 v14, 4, v1')
    for pr in range(2):
        for half in range(2):
            for w in range(8):
                r = 64 + (half * 8 + w) * 4
                e(f'ds_read_b128 v[{r}:{r+3}], v14 offset:{L_QP + w*4096 + (pr*2+half)*1024}')
        if pr == 0:
            e('s_lshl_b32 s13, s4, 17')
            e('s_lshl_b32 s14, s5, 9')
            e('s_add_u32 s13, s13, s14')
            if QRAW: e(f's_add_u32 s13, s13, {QRAW}')
            e('v_bfe_u32 v10, v1, 2, 2')
            e('v_lshlrev_b32 v10, 14, v10')
            e('v_lshl_add_u32 v10, v2, 6, v10')
            e('v_and_b32 v15, 3, v1')
            e('v_lshl_add_u32 v10, v15, 4, v10')
            e('v_add_u32 v56, s13, v10')
            e('v_add_u32 v57, 0x10000, v56')
        e('s_waitcnt lgkmcnt(0)')
        for half in range(2):
            dst = 32 + half * 4
            b0 = 64 + half * 32
            for r in range(4):
                e(f'v_add_f32 v{dst+r}, v{b0+r}, v{b0+4+r}')
            for w in range(2, 8):
                for r in range(4):
                    e(f'v_add_f32 v{dst+r}, v{dst+r}, v{b0+4*w+r}')
        for r in range(4): e(f'v_permlane32_swap_b32 v{32+r}, v{36+r}')
        ga = 40 + pr * 8
        e(f'v_add_f32 v{ga}, v32, v36')
        e(f'v_add_f32 v{ga+1}, v33, v37')
        e(f'v_mov_b32 v{ga+2}, s74')
        e(f'v_mov_b32 v{ga+3}, s75')
        e(f'v_add_f32 v{ga+4}, v34, v38')
        e(f'v_add_f32 v{ga+5}, v35, v39')
        e(f'v_mov_b32 v{ga+6}, s74')
        e(f'v_mov_b32 v{ga+7}, s75')
        va = 'v56' if pr == 0 else 'v57'
        if pr == 0: a.vm_wait(mk_clr)
        e(f'buffer_store_dwordx4 v[{ga}:{ga+3}], {va}, {SWS}, 0 offen {c.LST}')
        e(f'buffer_store_dwordx4 v[{ga+4}:{ga+7}], {va}, {SWS}, 0 offen offset:256 {c.LST}')
    e('s_lshl_b32 s13, s4, 3')
    e('s_add_u32 s13, s13, s6')
    e('s_lshl_b32 s13, s13, 14')
    if QRAW: e(f's_add_u32 s13, s13, {QRAW}')
    e('v_lshlrev_b32 v14, 9, v2')
    e('v_lshl_add_u32 v14, v3, 4, v14')
    e('v_add_u32 v14, s13, v14')
    e('v_lshlrev_b32 v15, 7, v2')
    e('v_bfe_u32 v10, v1, 2, 1')
    e('v_lshl_add_u32 v15, v10, 6, v15')
    e('v_bfe_u32 v10, v1, 3, 1')
    e('v_lshl_add_u32 v15, v10, 3, v15')
    e('v_and_b32 v10, 3, v1')
    e('v_lshl_add_u32 v15, v10, 1, v15')
    groups = []
    for n in range(8):
        lds = []; qs = []
        for ab in range(2):
            r = 64 + 8 * n + 4 * ab
            lds.append(f'buffer_load_dwordx4 v[{r}:{r+3}], v14, {SWS}, {sT(n//2)} offen offset:{(n%2)*2048 + ab*256} sc1')
            qs.append(r)
        groups.append((lds, qs))
    def q_pub_b():
        for pr in range(2):
            ga = 40 + pr * 8; va = 'v56' if pr == 0 else 'v57'
            e(f'buffer_store_dwordx4 v[{ga}:{ga+3}], {va}, {SWS}, s12 offen sc1')
            e(f'buffer_store_dwordx4 v[{ga+4}:{ga+7}], {va}, {SWS}, s12 offen offset:256 sc1')
    masked_poll('poll0', groups, 'tag', [10, 11], c.SLP0, ('v14',), c.RA0, q_pub_b)
    stamp(3)
    for uu in range(2):
        d = 32 + 4 * uu
        def qv(n, rr): return 64 + 8 * n + (rr >> 1) * 4 + (rr & 1)
        for r in range(4): e(f'v_add_f32 v{d+r}, v{qv(uu,r)}, v{qv(2+uu,r)}')
        for r in range(4): e(f'v_add_f32 v{d+r}, v{d+r}, v{qv(4+uu,r)}')
        for r in range(4): e(f'v_add_f32 v{d+r}, v{d+r}, v{qv(6+uu,r)}')
        e(f'v_cvt_pk_bf16_f32 v{60+2*uu}, v{d}, v{d+1}')
        e(f'v_cvt_pk_bf16_f32 v{61+2*uu}, v{d+2}, v{d+3}')
        o = L_QS + uu * 512
        e(f'ds_write_b16 v15, v{60+2*uu} offset:{o}')
        e(f'ds_write_b16_d16_hi v15, v{60+2*uu} offset:{o+16}')
        e(f'ds_write_b16 v15, v{61+2*uu} offset:{o+32}')
        e(f'ds_write_b16_d16_hi v15, v{61+2*uu} offset:{o+48}')
    for idx in range(c.NI0, c.X):
        if idx - c.NI0 >= c.N0: a.vm_pace(c.N0)
        issue(idx)
    stamp(4)
    e('s_waitcnt lgkmcnt(0)')
    e('s_barrier')
    e('s_branch L_main')
    a.vq = saved_vq
    a.label('L_others', pad=False)
    for idx in range(c.NI, c.X):
        a.vm_pace(c.N)
        issue(idx)
        if idx == c.WOI:
            exec_if_wave('ge', 4)
            for t in range(4):
                e(f'buffer_load_dwordx4 v[{32+4*t}:{35+4*t}], v12, {SWO}, {sT(2*t)} offen {c.WNT}')
            mk_wo = a.vm_mark()
            e('s_mov_b64 exec, -1')
    stamp(4)
    a.vm_wait(mk_wo)
    exec_if_wave('ge', 4)
    for t in range(4): e(f'ds_write_b128 v13, v[{32+4*t}:{35+4*t}] offset:{1024*t}')
    e('s_mov_b64 exec, -1')
    e('s_waitcnt lgkmcnt(0)')
    e('s_barrier')
    a.label('L_main', pad=False)
    stamp(2)
    scale = 128 ** -0.5; log2e = math.log2(math.e)
    cexp = log2e if c.MIMIC else scale * log2e
    def c_qfrag():
        e('v_lshrrev_b32 v14, 2, v3')
        e('v_lshlrev_b32 v14, 8, v14')
        e('v_lshl_add_u32 v14, v2, 4, v14')
        e('v_and_b32 v15, 1, v1')
        e('v_lshl_add_u32 v14, v15, 6, v14')
        for hf in range(2):
            e(f'ds_read_b128 v[{16+4*hf}:{19+4*hf}], v14 offset:{L_QS + hf*128}')
        e(f's_mov_b32 s24, {f32(scale):#x}')
        e('s_mov_b32 s25, 0xffff0000')
        e(f's_mov_b32 s26, {f32(cexp):#x}')
        e('s_waitcnt lgkmcnt(0)')
    def qk(t):
        swait(4 * t + 3)
        s = 32 + 4 * t
        y = 24 + 4 * (t % 2)
        for sub in range(2):
            d = s if sub == 0 else y
            for hf in range(2):
                r = kreg(t, sub * 2 + hf)
                cc = '0' if hf == 0 else f'v[{d}:{d+3}]'
                e(f'v_mfma_f32_16x16x32_bf16 v[{d}:{d+3}], v[{r}:{r+3}], v[{16+4*hf}:{19+4*hf}], {cc}')
    def qkfix(t):
        s = 32 + 4 * t
        y = 24 + 4 * (t % 2)
        for r in range(4): e(f'v_permlane32_swap_b32 v{s+r}, v{y+r}')
        for r in range(4): e(f'v_mov_b32_dpp v{s+r}, v{s+r} quad_perm:[0,0,2,2] row_mask:0xf bank_mask:0xf')
        for r in range(4): e(f'v_add_f32_dpp v{s+r}, v{y+r}, v{s+r} quad_perm:[1,1,3,3] row_mask:0xf bank_mask:0xf')
        if c.MIMIC:
            for step in range(8):
                for p in range(2):
                    x0 = s + 2 * p; x1 = x0 + 1; tt = 10 + p
                    e([f'v_cvt_pk_bf16_f32 v{tt}, v{x0}, v{x1}',
                       f'v_lshlrev_b32 v{x0}, 16, v{tt}',
                       f'v_and_b32 v{x1}, s25, v{tt}',
                       f'v_mul_f32 v{x0}, s24, v{x0}',
                       f'v_mul_f32 v{x1}, s24, v{x1}',
                       f'v_cvt_pk_bf16_f32 v{tt}, v{x0}, v{x1}',
                       f'v_lshlrev_b32 v{x0}, 16, v{tt}',
                       f'v_and_b32 v{x1}, s25, v{tt}'][step])
        if t == 0:
            e(f'v_max3_f32 v8, v{s}, v{s+1}, v{s+2}')
            e(f'v_max_f32 v8, v8, v{s+3}')
        else:
            e(f'v_max3_f32 v8, v8, v{s}, v{s+1}')
            e(f'v_max3_f32 v8, v8, v{s+2}, v{s+3}')
    def c_max():
        e('v_mov_b32 v9, v8')
        e('v_permlane32_swap_b32 v8, v9')
        e('v_max_f32 v8, v8, v9')
        e('v_mov_b32 v9, v8')
        e('v_permlane16_swap_b32 v8, v9')
        e('v_max_f32 v8, v8, v9')
        e('v_mul_f32 v8, s26, v8')
        e('v_sub_f32 v10, 0, v8')
        e('v_mov_b32 v9, 0')
        e('v_mov_b32 v11, 0')
    def c_exp(t):
        for r in range(4): e(f'v_fma_f32 v{32+4*t+r}, v{32+4*t+r}, s26, v10')
        for r in range(4): e(f'v_exp_f32 v{32+4*t+r}, v{32+4*t+r}')
        for r in range(4):
            idx = 4 * t + r
            s = 32 + idx; pb = 192 + 2 * idx
            la = 9 if idx % 2 == 0 else 11
            e(f'v_add_f32 v{la}, v{la}, v{s}')
            e(f'v_cvt_pk_bf16_f32 v{s}, v{s}, v{s}')
            e(f'v_and_b32 v{pb}, v6, v{s}')
            e(f'v_and_b32 v{pb+1}, v7, v{s}')
    def c_lred():
        e('v_add_f32 v9, v9, v11')
        e('v_mov_b32 v11, v9')
        e('v_permlane32_swap_b32 v9, v11')
        e('v_add_f32 v9, v9, v11')
        e('v_mov_b32 v11, v9')
        e('v_permlane16_swap_b32 v9, v11')
        e('v_add_f32 v9, v9, v11')
        stamp(5)
        e('s_lshl_b32 s13, s3, 11')
        e('v_lshlrev_b32 v29, 4, v1')
        e('v_add_u32 v16, s13, v29')
        e('s_lshl_b32 s13, s3, 3')
        e('v_add_u32 v17, s13, v29')
        e('s_mov_b32 exec_lo, 0x1111')
        e('s_mov_b32 exec_hi, 0')
        e(f'ds_write_b64 v17, v[8:9] offset:{L_ML}')
        e('s_mov_b64 exec, -1')
    def c_prep():
        e('s_and_b32 s11, s3, 1')
        e('v_and_b32 v18, 1, v1')
        e('v_lshlrev_b32 v18, 10, v18')
        e('v_bfe_u32 v10, v1, 1, 2')
        e('v_lshl_add_u32 v18, v10, 8, v18')
        e('v_bfe_u32 v10, v1, 3, 2')
        e('v_lshl_add_u32 v18, v10, 4, v18')
        e('v_lshrrev_b32 v10, 5, v1')
        e('s_lshl_b32 s13, s11, 1')
        e('v_add_u32 v10, s13, v10')
        e('v_lshl_add_u32 v18, v10, 6, v18')
        e('v_lshlrev_b32 v19, 6, v10')
        addr_p1('v20', 'v21', 'v10', 's11')
        e('s_cmp_lt_u32 s3, 4')
        e('s_cbranch_scc1 L_prep03')
        e('v_mul_u32_u24 v10, 4128, v2')
        e('v_lshl_add_u32 v10, v3, 1, v10')
        e('s_and_b32 s14, s3, 3')
        e('s_lshl_b32 s13, s14, 5')
        e('v_add_u32 v10, s13, v10')
        for kk in range(4):
            for half in range(2):
                for r in range(4):
                    e(f'ds_read_u16 v{32 + (kk*2+half)*4 + r}, v10 offset:{L_WO + (8*r + 4*half + kk)*128}')
        e('s_lshl_b32 s13, s14, 12')
        e('v_add_u32 v11, s13, v29')
        e('s_waitcnt lgkmcnt(0)')
        for n in range(16): e(f'v_lshl_or_b32 v{32+n}, v{33+2*n}, 16, v{32+2*n}')
        for q4 in range(4): e(f'ds_write_b128 v11, v[{32+4*q4}:{35+4*q4}] offset:{L_WOF + 1024*q4}')
        e('s_branch L_pv')
        a.label('L_prep03', pad=False)
        e('v_and_b32 v10, 7, v1')
        e('v_lshlrev_b32 v22, 7, v10')
        e('v_lshl_add_u32 v22, v2, 5, v22')
        e('v_bfe_u32 v11, v1, 3, 1')
        e('v_lshl_add_u32 v22, v11, 4, v22')
        e('s_lshl_b32 s13, s10, 14')
        e('s_lshl_b32 s14, s3, 10')
        e('s_add_u32 s13, s13, s14')
        e(f's_add_u32 s13, s13, {PART1}')
        e('v_add_u32 v22, s13, v22')
        e('s_lshl_b32 s13, s10, 10')
        e('s_lshl_b32 s14, s3, 8')
        e('s_add_u32 s13, s13, s14')
        e(f's_add_u32 s13, s13, {MLG}')
        e('v_lshlrev_b32 v23, 5, v10')
        e('v_add_u32 v23, s13, v23')
        e('v_lshlrev_b32 v25, 3, v1')
        e('s_lshl_b32 s13, s3, 9')
        e('v_add_u32 v24, s13, v25')
        e('v_lshlrev_b32 v26, 17, v10')
        e('v_lshl_add_u32 v26, v2, 4, v26')
        e('s_lshl_b32 s13, s9, 2')
        e('s_add_u32 s13, s13, s3')
        e('s_lshl_b32 s13, s13, 12')
        e('s_lshl_b32 s14, s10, 6')
        e('s_add_u32 s13, s13, s14')
        e(f's_add_u32 s13, s13, {INBOX2}')
        e('v_add_u32 v26, s13, v26')
        addr_inbox('v27')
        e('s_lshl_b32 s13, s2, 5')
        e('v_lshlrev_b32 v28, 3, v1')
        e('v_add_u32 v28, s13, v28')
        e('s_lshl_b32 s13, s3, 12')
        e('v_add_u32 v30, s13, v29')
        a.label('L_pv', pad=False)
    def wreg(kk, half): return 32 + (kk * 2 + half) * 2
    def pv(i):
        t, rr = i // 4, i % 4
        swait(32 + i)
        vr = vreg(t, rr); pb = 192 + 2 * i
        for half in range(2):
            d = 48 + 4 * half
            cc = '0' if i == 0 else f'v[{d}:{d+3}]'
            e(f'v_mfma_f32_16x16x16_bf16 v[{d}:{d+3}], v[{vr+2*half}:{vr+2*half+1}], v[{pb}:{pb+1}], {cc}')
    N2 = c.N2
    chunks = [(c.X, 1, c_qfrag)]
    for t in range(8):
        chunks.append((4 * t + 3 + N2, 1, (lambda t=t: qk(t))))
        if t: chunks.append((0, 2, (lambda t=t: qkfix(t - 1))))
    chunks.append((0, 3, lambda: qkfix(7)))
    chunks.append((0, 1, c_max))
    for t in range(8): chunks.append((0, 2, (lambda t=t: c_exp(t))))
    chunks.append((0, 1, c_lred))
    chunks.append((0, 4, c_prep))
    BUD = c.BUD
    ci = 0; pvi = 0
    qk_done_upto = -1
    for idx in range(c.X, 64):
        if idx >= 48:
            need_t = (idx - 48) // 4
            while ci < len(chunks) and ci <= 2 * need_t + 1:
                chunks[ci][2](); ci += 1
        a.vm_pace(N2)
        issue(idx)
        bud = BUD
        while ci < len(chunks) and chunks[ci][0] <= idx and bud > 0:
            bud -= chunks[ci][1]; chunks[ci][2](); ci += 1
        if ci == len(chunks):
            n = 0
            while pvi < 32 and 32 + pvi <= idx - N2 and n < c.PVR:
                pv(pvi); pvi += 1; n += 1
    while ci < len(chunks):
        chunks[ci][2](); ci += 1
    while pvi < 32:
        pv(pvi); pvi += 1
    stamp(6)
    e(f'ds_write_b128 v16, v[48:51] offset:{L_ACC}')
    e(f'ds_write_b128 v16, v[52:55] offset:{L_ACC+1024}')
    e('s_waitcnt lgkmcnt(0)')
    e('s_barrier')
    e('s_cmp_ge_u32 s3, 6')
    e(f's_cbranch_scc1 {LEND}')
    e('s_bitcmp1_b32 s3, 1')
    e('s_cbranch_scc1 L_stageC')
    for j in range(4): e(f'ds_read_b128 v[{64+4*j}:{67+4*j}], v19 offset:{L_ML + 16*j}')
    for w in range(8): e(f'ds_read_b128 v[{80+4*w}:{83+4*w}], v18 offset:{L_ACC + w*2048}')
    e('s_waitcnt lgkmcnt(8)')
    e('v_max3_f32 v8, v64, v66, v68')
    e('v_max3_f32 v9, v70, v72, v74')
    e('v_max3_f32 v8, v8, v76, v78')
    e('v_max_f32 v8, v8, v9')
    for w in range(8): e(f'v_sub_f32 v{64+2*w}, v{64+2*w}, v8')
    for w in range(8): e(f'v_exp_f32 v{64+2*w}, v{64+2*w}')
    e('v_mul_f32 v9, v64, v65')
    for w in range(1, 8): e(f'v_fmac_f32 v9, v{64+2*w}, v{65+2*w}')
    e('s_waitcnt lgkmcnt(0)')
    for r in range(4): e(f'v_mul_f32 v{56+r}, v64, v{80+r}')
    for w in range(1, 8):
        for r in range(4): e(f'v_fmac_f32 v{56+r}, v{64+2*w}, v{80+4*w+r}')
    for r in range(4): e(f'v_min_u32 v{56+r}, -2, v{56+r}')
    e('v_min_u32 v8, -2, v8')
    e('v_min_u32 v9, -2, v9')
    e('s_cmp_ge_u32 s3, 4')
    e('s_cbranch_scc1 L_stageAB')
    e(f'buffer_store_dwordx4 v[56:59], v20, {SWS}, 0 offen {c.LST}')
    e('s_mov_b32 exec_lo, 0x01010101')
    e('s_mov_b32 exec_hi, 0x01010101')
    e(f'buffer_store_dwordx2 v[8:9], v21, {SWS}, 0 offen {c.LST}')
    e('s_mov_b64 exec, -1')
    stamp(7)
    a.label('L_stageC', pad=False)
    for q4 in range(4): e(f'ds_read_b128 v[{32+4*q4}:{35+4*q4}], v30 offset:{L_WOF + 1024*q4}')
    groups = [([f'buffer_load_dwordx4 v[{64+4*s}:{67+4*s}], v22, {SWS}, {sT(s)} offen sc1'], [64 + 4 * s]) for s in range(4)]
    groups.append(([f'buffer_load_dwordx4 v[80:83], v23, {SWS}, 0 offen sc1', f'buffer_load_dwordx4 v[84:87], v23, {SWS}, 0 offen offset:16 sc1'], [80, 84]))
    masked_poll('poll1', groups, 'sent', [12, 13, 10, 11], c.SLP1, ('v22', 'v23'), c.RA1)
    stamp(8)
    e('v_max3_f32 v8, v80, v82, v84')
    e('v_max_f32 v8, v8, v86')
    for s in range(4): e(f'v_sub_f32 v{80+2*s}, v{80+2*s}, v8')
    for s in range(4): e(f'v_exp_f32 v{80+2*s}, v{80+2*s}')
    e('v_mul_f32 v9, v80, v81')
    for s in range(1, 4): e(f'v_fmac_f32 v9, v{80+2*s}, v{81+2*s}')
    e('v_rcp_f32 v9, v9')
    for r in range(4): e(f'v_mul_f32 v{56+r}, v80, v{64+r}')
    for s in range(1, 4):
        for r in range(4): e(f'v_fmac_f32 v{56+r}, v{80+2*s}, v{64+4*s+r}')
    for r in range(4): e(f'v_mul_f32 v{56+r}, v{56+r}, v9')
    e('v_cvt_pk_bf16_f32 v60, v56, v57')
    e('v_cvt_pk_bf16_f32 v61, v58, v59')
    e(f'ds_write_b64 v24, v[60:61] offset:{L_BX}')
    e('s_waitcnt lgkmcnt(0)')
    e('s_barrier')
    for kk in range(4): e(f'ds_read_b64 v[{64+2*kk}:{65+2*kk}], v25 offset:{L_BX + kk*512}')
    e('s_waitcnt lgkmcnt(0)')
    for kk in range(4):
        for half in range(2):
            d = 48 + 4 * half; w = wreg(kk, half)
            cc = '0' if kk == 0 else f'v[{d}:{d+3}]'
            e(f'v_mfma_f32_16x16x16_bf16 v[{d}:{d+3}], v[{w}:{w+1}], v[{64+2*kk}:{65+2*kk}], {cc}')
    e('v_mov_b32 v58, s74')
    e('v_mov_b32 v59, s75')
    e('v_mov_b32 v62, s74')
    e('v_mov_b32 v63, s75')
    for r in range(4): e(f'v_add_f32_dpp v{56+(r>>1)*4+(r&1)}, v{52+r}, v{48+r} row_shl:8 row_mask:0xf bank_mask:0xf bound_ctrl:0')
    e('s_mov_b32 exec_lo, 0x00ff00ff')
    e('s_mov_b32 exec_hi, 0x00ff00ff')
    e(f'buffer_store_dwordx4 v[56:59], v26, {SWS}, 0 offen sc1')
    e(f'buffer_store_dwordx4 v[60:63], v26, {SWS}, 0 offen offset:2048 sc1')
    e('s_mov_b64 exec, -1')
    stamp(9)
    e('s_cmp_lg_u32 s3, 0')
    e(f's_cbranch_scc1 {LEND}')
    groups = [([f'buffer_load_dwordx4 v[{72+4*j}:{75+4*j}], v27, {SWS}, 0 offen offset:{1024*j} sc1' for j in (hh, hh + 2)], [72 + 4 * hh, 80 + 4 * hh]) for hh in range(2)]
    masked_poll('poll2', groups, 'tag', [8, 9], c.SLP2)
    stamp(10)
    e('v_add_f32 v64, v72, v76')
    e('v_add_f32 v65, v73, v77')
    e('v_add_f32 v66, v80, v84')
    e('v_add_f32 v67, v81, v85')
    for r in range(4): e(f'v_add_f32_dpp v{68+r}, v{64+r}, v{64+r} row_ror:8 row_mask:0xf bank_mask:0xf')
    for r in range(4): e(f'v_add_f32_dpp v{64+r}, v{68+r}, v{68+r} row_ror:4 row_mask:0xf bank_mask:0xf')
    for r in range(4): e(f'v_mov_b32 v{68+r}, v{64+r}')
    for r in range(4): e(f'v_permlane16_swap_b32 v{64+r}, v{68+r}')
    for r in range(4): e(f'v_add_f32 v{64+r}, v{64+r}, v{68+r}')
    for r in range(4): e(f'v_mov_b32 v{68+r}, v{64+r}')
    for r in range(4): e(f'v_permlane32_swap_b32 v{64+r}, v{68+r}')
    for r in range(4): e(f'v_add_f32 v{64+r}, v{64+r}, v{68+r}')
    e('v_cvt_pk_bf16_f32 v60, v64, v65')
    e('v_cvt_pk_bf16_f32 v61, v66, v67')
    e('v_mov_b32 v62, s74')
    e('v_mov_b32 v63, s75')
    e(f'v_mov_b32 v8, {EPOCH}')
    e('s_mov_b32 exec_lo, 0xf')
    e('s_mov_b32 exec_hi, 0')
    e(f'buffer_store_dwordx2 v[60:61], v28, {SOUT}, 0 offen')
    e('s_cmp_eq_u32 s2, 0')
    e('s_cselect_b32 exec_lo, 1, 0')
    e(f'buffer_store_dwordx2 v[62:63], v8, {SWS}, 0 offen')
    e(f's_branch {LEND}')
    a.label('L_stageAB', pad=False)
    e(f'buffer_store_dwordx4 v[56:59], v20, {SWS}, s12 offen sc1')
    e('s_mov_b32 exec_lo, 0x01010101')
    e('s_mov_b32 exec_hi, 0x01010101')
    e(f'buffer_store_dwordx2 v[8:9], v21, {SWS}, s12 offen sc1')
    if c.STAMPS:
        a.label('L_dump', pad=True)
        stamp(11)
        e('s_mov_b32 exec_lo, 1')
        e('s_mov_b32 exec_hi, 0')
        e('s_waitcnt lgkmcnt(0)')
        e('s_lshl_b32 s13, s2, 10')
        e('s_lshl_b32 s14, s3, 7')
        e('s_add_u32 s13, s13, s14')
        e(f's_add_u32 s13, s13, {STAMP}')
        e('v_mov_b32 v8, s13')
        for k2 in range(6):
            for j in range(4): e(f'v_mov_b32 v{64+j}, s{76+4*k2+j}')
            e(f'buffer_store_dwordx4 v[64:67], v8, {SWS}, 0 offen offset:{16*k2}')
            e('s_nop 1')
    a.label('L_end', pad=False)
    e('s_endpgm')
    return a

HEADER = """; GQA decode (B=8,Hq=32,Hkv=8,Sk=4096,Dh=128,D=512), single launch, generated by gen.py
; @launch grid=(256,1,1) block=(512,1,1) lds=%d
.amdgcn_target "amdgcn-amd-amdhsa--gfx950"
.text
"""
def footer(nm, sg):
    return f""".section .rodata,"a"
.p2align 6
.amdhsa_kernel {nm}
  .amdhsa_next_free_vgpr 256
  .amdhsa_next_free_sgpr {sg}
  .amdhsa_accum_offset 256
  .amdhsa_group_segment_fixed_size 0
  .amdhsa_kernarg_size 64
  .amdhsa_user_sgpr_count 2
  .amdhsa_user_sgpr_kernarg_segment_ptr 1
  .amdhsa_system_sgpr_workgroup_id_x 1
.end_amdhsa_kernel
"""
if __name__ == '__main__':
    c = Cfg()
    out = sys.argv[1]
    for kv in sys.argv[2:]:
        k, v = kv.split('=')
        setattr(c, k, int(v) if v.lstrip('-').isdigit() else v)
    for k in ('NT','WNT','LST'):
        v = getattr(c, k)
        setattr(c, k, '' if v == 'none' else v.replace('+', ' '))
    a = gen(c)
    open(out, 'w').write(HEADER % LDS_BYTES + a.text() + footer(c.NAME, 102))
    print('instr lines', len(a.lines), 'nops', a.nops, 'lds', LDS_BYTES)
```

```python
import sys, struct, math, os
from asmlib import Asm
def f32(x): return struct.unpack('<I', struct.pack('<f', x))[0]

class Cfg:
    NI = 4
    NI0 = 16
    X = 24
    WOI = 8
    BUD = 3
    PVR = 3
    N = 4
    N0 = 12
    N2 = 4
    MIMIC = 1
    STAMPS = 0
    NT = 'nt'
    WNT = 'nt'
    NAME = 'standalone__gqa_block_cached__decode_kernel'
    SPIN = 200000
    SLP0 = 2
    RA0 = 24
    RA1 = 24
    NOA = 0
    LST = 'none'
    SLP1 = 2
    SLP2 = 2

QRAW = 0
PART1 = 1 << 20
MLG = (1 << 20) + (1 << 19)
INBOX2 = 2 << 20
EPOCH = (3 << 20) + 4096
STAMP = 128 << 20
BOFF = 4 << 20
L_QP = 0
L_ACC = 0
L_WO = 32768
L_QS = 49408
L_ML = 50432
L_BX = 50688
L_WOF = 52736
LDS_BYTES = 52736 + 16384

SX, SK, SV, SWQ, SWO, SOUT, SDBG, SWS = ['s[%d:%d]' % (b, b + 3) for b in (32, 36, 40, 44, 48, 52, 56, 60)]
def sT(t): return '0' if t == 0 else 's%d' % (64 + t)

def gen(c):
    a = Asm(); e = a.e
    nm = c.NAME
    LEND = 'L_dump' if c.STAMPS else 'L_end'
    def stamp(k):
        if c.STAMPS: e(f's_memrealtime s[{76+2*k}:{77+2*k}]')
    def exec_if_wave(cmp, val, lo='-1', hi='-1'):
        e(f's_cmp_{cmp}_u32 s3, {val}')
        e(f's_cselect_b32 exec_lo, {lo}, 0')
        e(f's_cselect_b32 exec_hi, {hi}, 0')
    MASKS = [0, 24, 26, 28, 30, 56, 58, 14]
    def masked_poll(name, groups, kind, tmp, slp, tog=(), ra=0, hook=None):
        for gi in range(len(groups)): e(f's_mov_b64 s[{MASKS[gi]}:{MASKS[gi]+1}], -1')
        e(f's_mov_b32 s73, {c.SPIN}')
        a.label(f'L_{name}', pad=False)
        for gi, (loads, quads) in enumerate(groups):
            m = MASKS[gi]
            e(f's_mov_b64 exec, s[{m}:{m+1}]')
            e(f's_cbranch_execz L_{name}_s{gi}')
            for l in loads: e(l)
            a.label(f'L_{name}_s{gi}', pad=False)
        e('s_waitcnt vmcnt(0)')
        for gi, (loads, quads) in enumerate(groups):
            m = MASKS[gi]
            t = tmp[gi % len(tmp)]
            e(f's_mov_b64 exec, s[{m}:{m+1}]')
            if kind == 'tag':
                for q in quads:
                    e(f'v_xor_b32 v{q+2}, s74, v{q+2}')
                    e(f'v_xor_b32 v{q+3}, s75, v{q+3}')
                if len(quads) == 1:
                    e(f'v_or_b32 v{t}, v{quads[0]+2}, v{quads[0]+3}')
                else:
                    e(f'v_or3_b32 v{t}, v{quads[0]+2}, v{quads[0]+3}, v{quads[1]+2}')
                    e(f'v_or_b32 v{t}, v{t}, v{quads[1]+3}')
                e(f'v_cmp_ne_u32 s[{m}:{m+1}], 0, v{t}')
            else:
                regs = [q + r for q in quads for r in range(4)]
                e(f'v_max3_u32 v{t}, v{regs[0]}, v{regs[1]}, v{regs[2]}')
                k = 3
                while k < len(regs):
                    if k + 1 < len(regs):
                        e(f'v_max3_u32 v{t}, v{t}, v{regs[k]}, v{regs[k+1]}'); k += 2
                    else:
                        e(f'v_max_u32 v{t}, v{t}, v{regs[k]}'); k += 1
                e(f'v_cmp_eq_u32 s[{m}:{m+1}], -1, v{t}')
        e('s_mov_b64 exec, -1')
        e(f's_or_b64 vcc, s[{MASKS[0]}:{MASKS[0]+1}], s[{MASKS[1]}:{MASKS[1]+1}]')
        for gi in range(2, len(groups)): e(f's_or_b64 vcc, vcc, s[{MASKS[gi]}:{MASKS[gi]+1}]')
        e(f's_cbranch_scc0 L_{name}_done')
        e(f's_sleep {slp}')
        if hook:
            e(f's_cmp_lg_u32 s73, {c.SPIN - ra}')
            e(f's_cbranch_scc1 L_{name}_nohook')
            hook()
            a.label(f'L_{name}_nohook', pad=False)
        if tog:
            e(f's_cmp_le_u32 s73, {c.SPIN - ra}')
            e(f's_cselect_b32 s13, {BOFF}, 0')
            for v in tog: e(f'v_xor_b32 {v}, s13, {v}')
        e('s_sub_u32 s73, s73, 1')
        e('s_cmp_lg_u32 s73, 0')
        e(f's_cbranch_scc1 L_{name}')
        a.label(f'L_{name}_done', pad=False)
        if hook:
            e(f's_cmp_lt_u32 s73, {c.SPIN - ra}')
            e(f's_cbranch_scc1 L_{name}_nohook2')
            hook()
            a.label(f'L_{name}_nohook2', pad=False)
    a.raw(f'.globl {nm}\n.p2align 8\n.type {nm},@function\n{nm}:')
    e('s_cmp_ge_u32 s2, 256')
    e('s_cbranch_scc1 L_end')
    e('s_load_dwordx16 s[16:31], s[0:1], 0')
    if c.STAMPS:
        for k in range(76, 100): e(f's_mov_b32 s{k}, 0')
    stamp(0)
    e('v_lshrrev_b32 v1, 6, v0')
    e('v_readfirstlane_b32 s3, v1')
    e('v_and_b32 v1, 63, v0')
    e('v_lshrrev_b32 v2, 4, v1')
    e('v_and_b32 v3, 15, v1')
    e('s_and_b32 s4, s2, 7')
    e('s_lshr_b32 s5, s2, 3')
    e('s_lshr_b32 s6, s5, 2')
    e('s_and_b32 s7, s5, 3')
    e('s_lshr_b32 s8, s5, 3')
    e('s_and_b32 s9, s5, 7')
    e('s_lshl_b32 s10, s4, 2')
    e('s_add_u32 s10, s10, s8')
    for t in range(1, 9): e(f's_mov_b32 s{64+t}, {t*4096}')
    e('s_lshl_b32 s11, s8, 7')
    e('s_lshl_b32 s12, s3, 4')
    e('s_add_u32 s11, s11, s12')
    e('s_lshl_b32 s12, s11, 13')
    e('s_lshl_b32 s13, s4, 10')
    e('s_add_u32 s12, s12, s13')
    e('s_lshl_b32 s13, s9, 7')
    e('s_add_u32 s12, s12, s13')
    e('v_lshrrev_b32 v8, 3, v3')
    e('v_lshl_add_u32 v8, v2, 2, v8')
    e('v_lshlrev_b32 v8, 13, v8')
    e('v_and_b32 v9, 7, v3')
    e('v_lshl_add_u32 v8, v9, 4, v8')
    e('v_add_u32 v8, s12, v8')
    e('v_lshrrev_b32 v9, 2, v3')
    e('v_lshlrev_b32 v9, 10, v9')
    e('v_lshl_add_u32 v9, v2, 3, v9')
    e('s_lshl_b32 s13, s11, 1')
    e('v_add_u32 v9, s13, v9')
    e('s_lshl_b32 s13, s6, 5')
    e('s_lshl_b32 s14, s4, 2')
    e('s_add_u32 s13, s13, s14')
    e('s_add_u32 s13, s13, s7')
    e('s_lshl_b32 s13, s13, 18')
    e('s_lshl_b32 s14, s3, 12')
    e('s_add_u32 s13, s13, s14')
    e('v_and_b32 v4, 3, v3')
    e('v_bfe_u32 v5, v3, 2, 1')
    e('v_lshl_add_u32 v4, v4, 2, v5')
    e('v_lshlrev_b32 v4, 8, v4')
    e('v_lshl_add_u32 v4, v2, 4, v4')
    e('v_lshrrev_b32 v5, 3, v3')
    e('v_lshl_add_u32 v4, v5, 6, v4')
    e('v_add_u32 v4, s13, v4')
    e('v_lshlrev_b32 v5, 4, v1')
    e('v_add_u32 v5, s13, v5')
    e('s_waitcnt lgkmcnt(0)')
    def srd(base, p, size):
        e(f's_mov_b32 s{base}, s{p}')
        e(f's_and_b32 s{base+1}, s{p+1}, 0xffff')
        e(f's_mov_b32 s{base+2}, {size}')
        e(f's_mov_b32 s{base+3}, 0x20000')
    srd(44, 22, 4 << 20); srd(32, 16, 8192)
    e(f'buffer_load_dwordx4 v[64:67], v8, {SWQ}, 0 offen {c.WNT}')
    e(f'buffer_load_dwordx4 v[68:71], v8, {SWQ}, {sT(4)} offen {c.WNT}')
    e(f'buffer_load_dwordx2 v[72:73], v9, {SX}, 0 offen')
    e(f'buffer_load_dwordx2 v[74:75], v9, {SX}, {sT(1)} offen')
    mk_wq = a.vm_mark()
    srd(36, 18, 64 << 20)
    e(f's_add_u32 s14, s30, {EPOCH}')
    e('s_addc_u32 s15, s31, 0')
    e('s_load_dwordx2 s[74:75], s[14:15], 0')
    srd(48, 24, 4 << 20); srd(40, 20, 64 << 20); srd(52, 26, 8192); srd(60, 30, 256 << 20)
    for j in range(1, 8): e(f's_mov_b32 s{16+j}, {j*32768}')
    def sJ(j): return '0' if j == 0 else 's%d' % (16 + j)
    marks = {}
    issued = [0]
    def swait(idx):
        n = issued[0] - (idx + 1)
        assert n >= 0
        e(f's_waitcnt vmcnt({min(n,63)})')
    def kreg(t, kk): return 128 + 16 * t + 4 * kk
    def vreg(t, rr): return (64 + 16 * t + 4 * rr) if t < 4 else (128 + 16 * (t - 4) + 4 * rr)
    def issue(idx):
        if idx < 32:
            t, kk = idx // 4, idx % 4; r = kreg(t, kk)
            e(f'buffer_load_dwordx4 v[{r}:{r+3}], v4, {SK}, {sJ(t)} offen offset:{(kk>>1)*512 + (kk&1)*128} {c.NT}')
        else:
            t, rr = (idx - 32) // 4, idx % 4; r = vreg(t, rr)
            e(f'buffer_load_dwordx4 v[{r}:{r+3}], v5, {SV}, {sJ(t)} offen offset:{rr*1024} {c.NT}')
        marks[idx] = a.vm_mark()
        issued[0] = idx + 1
    for idx in range(c.NI): issue(idx)
    e('v_and_b32 v14, 1, v1')
    e('v_lshlrev_b32 v14, 4, v14')
    e('v_mov_b32 v15, 0xffff')
    e('v_lshlrev_b32 v15, v14, v15')
    e('v_and_b32 v14, 3, v1')
    e('v_cmp_gt_u32 vcc, 2, v14')
    e('v_cndmask_b32 v6, 0, v15, vcc')
    e('v_xor_b32 v7, v15, v6')
    e('s_and_b32 s15, s3, 3')
    e('s_lshl_b32 s13, s10, 7')
    e('s_lshl_b32 s14, s15, 5')
    e('s_add_u32 s13, s13, s14')
    e('s_lshl_b32 s13, s13, 10')
    e('s_lshl_b32 s14, s9, 7')
    e('s_add_u32 s13, s13, s14')
    e('v_lshrrev_b32 v10, 3, v1')
    e('v_and_b32 v11, 7, v1')
    e('v_lshlrev_b32 v12, 10, v10')
    e('v_lshl_add_u32 v12, v11, 4, v12')
    e('v_add_u32 v12, s13, v12')
    e('s_mul_i32 s13, s15, 4128')
    e(f's_add_u32 s13, s13, {L_WO}')
    e('v_lshlrev_b32 v13, 4, v1')
    e('v_add_u32 v13, s13, v13')
    e('v_mov_b32 v14, 0x0c0c0c0c')
    e('s_mov_b32 s13, 0x01000100')
    e('s_mov_b32 s14, 0x03020302')
    e('v_bfi_b32 v84, v6, s13, v14')
    e('v_bfi_b32 v85, v7, s13, v14')
    e('v_bfi_b32 v86, v6, s14, v14')
    e('v_bfi_b32 v87, v7, s14, v14')
    e('s_mov_b32 vcc_lo, 0')
    e('s_mov_b32 vcc_hi, -1')
    e('s_lshl_b32 s13, s3, 12')
    e('v_lshlrev_b32 v14, 4, v1')
    e('v_add_u32 v14, s13, v14')
    def addr_p1(vd, vm, vt, alpha_sgpr):
        e(f'v_lshrrev_b32 {vt}, 5, v1')
        e(f'v_lshlrev_b32 {vd}, 14, {vt}')
        e(f'v_lshlrev_b32 {vm}, 10, {vt}')
        e(f'v_bfe_u32 {vt}, v1, 3, 2')
        e(f'v_lshl_add_u32 {vd}, {vt}, 10, {vd}')
        e(f'v_lshl_add_u32 {vm}, {vt}, 8, {vm}')
        e(f'v_and_b32 {vt}, 7, v1')
        e(f'v_lshl_add_u32 {vd}, {vt}, 4, {vd}')
        e('s_lshl_b32 s13, s4, 16')
        e('s_lshl_b32 s14, s7, 12')
        e('s_add_u32 s13, s13, s14')
        e('s_lshl_b32 s14, s6, 7')
        e('s_add_u32 s13, s13, s14')
        e(f's_add_u32 s13, s13, {PART1}')
        if alpha_sgpr:
            e(f's_lshl_b32 s14, {alpha_sgpr}, 15')
            e('s_add_u32 s13, s13, s14')
        e(f'v_add_u32 {vd}, s13, {vd}')
        e('s_lshl_b32 s13, s4, 12')
        e('s_lshl_b32 s14, s6, 5')
        e('s_add_u32 s13, s13, s14')
        e('s_lshl_b32 s14, s7, 3')
        e('s_add_u32 s13, s13, s14')
        e(f's_add_u32 s13, s13, {MLG}')
        if alpha_sgpr:
            e(f's_lshl_b32 s14, {alpha_sgpr}, 11')
            e('s_add_u32 s13, s13, s14')
        e(f'v_add_u32 {vm}, s13, {vm}')
    def addr_inbox(vd):
        e('s_lshl_b32 s13, s2, 12')
        e(f's_add_u32 s13, s13, {INBOX2}')
        e(f'v_lshlrev_b32 {vd}, 4, v1')
        e(f'v_add_u32 {vd}, s13, {vd}')
    a.vm_wait(mk_wq)
    def dq(bg, aa, half): return 96 + ((bg * 2 + aa) * 2 + half) * 4
    k = 0
    for t in range(2):
        for bg in range(2):
            for aa in range(2):
                bt = 88 + 2 * (k % 4); k += 1
                xw = 72 + 2 * bg + t
                e(f'v_perm_b32 v{bt}, v{xw}, v{xw}, v{84+2*aa}')
                e(f'v_perm_b32 v{bt+1}, v{xw}, v{xw}, v{85+2*aa}')
                for half in range(2):
                    d = dq(bg, aa, half); A0 = 64 + 4 * t + 2 * half
                    cc = '0' if t == 0 else f'v[{d}:{d+3}]'
                    e(f'v_mfma_f32_16x16x16_bf16 v[{d}:{d+3}], v[{A0}:{A0+1}], v[{bt}:{bt+1}], {cc}')
    saved_vq = list(a.vq)
    e('s_cmp_lg_u32 s3, 0')
    e('s_cbranch_scc1 L_merge')
    addr_p1('v48', 'v49', 'v50', None)
    for r in range(4): e(f'v_mov_b32 v{52+r}, -1')
    e(f'v_add_u32 v50, {BOFF}, v48')
    e(f'v_add_u32 v51, {BOFF}, v49')
    for va in ('v48', 'v50'):
        e(f'buffer_store_dwordx4 v[52:55], {va}, {SWS}, 0 offen sc1')
        e(f'buffer_store_dwordx4 v[52:55], {va}, {SWS}, {sT(8)} offen sc1')
    e('s_mov_b32 exec_lo, 0x01010101')
    e('s_mov_b32 exec_hi, 0x01010101')
    for va in ('v49', 'v51'):
        e(f'buffer_store_dwordx2 v[52:53], {va}, {SWS}, 0 offen sc1')
        e(f'buffer_store_dwordx2 v[52:53], {va}, {SWS}, 0 offen offset:2048 sc1')
    mk_clr = a.vm_mark()
    e('s_mov_b64 exec, -1')
    for idx in range(c.NI, c.NI0): issue(idx)
    a.label('L_merge', pad=True)
    for bg in range(2):
        for half in range(2):
            d0 = dq(bg, 0, half); d1 = dq(bg, 1, half)
            for r in range(4): e(f'v_cndmask_b32 v{d0+r}, v{d0+r}, v{d1+r}, vcc')
            e(f'ds_write_b128 v14, v[{d0}:{d0+3}] offset:{L_QP + (bg*2+half)*1024}')
    e('s_waitcnt lgkmcnt(0)')
    e('s_barrier')
    stamp(1)
    e('s_mov_b32 s12, %d' % BOFF)
    e('s_add_u32 s74, s74, 1')
    e('s_add_u32 s75, s75, 0x9E3779B9')
    e('s_cmp_lg_u32 s3, 0')
    e('s_cbranch_scc1 L_others')
    e('v_lshlrev_b32 v14, 4, v1')
    for pr in range(2):
        for half in range(2):
            for w in range(8):
                r = 64 + (half * 8 + w) * 4
                e(f'ds_read_b128 v[{r}:{r+3}], v14 offset:{L_QP + w*4096 + (pr*2+half)*1024}')
        if pr == 0:
            e('s_lshl_b32 s13, s4, 17')
            e('s_lshl_b32 s14, s5, 9')
            e('s_add_u32 s13, s13, s14')
            if QRAW: e(f's_add_u32 s13, s13, {QRAW}')
            e('v_bfe_u32 v10, v1, 2, 2')
            e('v_lshlrev_b32 v10, 14, v10')
            e('v_lshl_add_u32 v10, v2, 6, v10')
            e('v_and_b32 v15, 3, v1')
            e('v_lshl_add_u32 v10, v15, 4, v10')
            e('v_add_u32 v56, s13, v10')
            e('v_add_u32 v57, 0x10000, v56')
        e('s_waitcnt lgkmcnt(0)')
        for half in range(2):
            dst = 32 + half * 4
            b0 = 64 + half * 32
            for r in range(4):
                e(f'v_add_f32 v{dst+r}, v{b0+r}, v{b0+4+r}')
            for w in range(2, 8):
                for r in range(4):
                    e(f'v_add_f32 v{dst+r}, v{dst+r}, v{b0+4*w+r}')
        for r in range(4): e(f'v_permlane32_swap_b32 v{32+r}, v{36+r}')
        ga = 40 + pr * 8
        e(f'v_add_f32 v{ga}, v32, v36')
        e(f'v_add_f32 v{ga+1}, v33, v37')
        e(f'v_mov_b32 v{ga+2}, s74')
        e(f'v_mov_b32 v{ga+3}, s75')
        e(f'v_add_f32 v{ga+4}, v34, v38')
        e(f'v_add_f32 v{ga+5}, v35, v39')
        e(f'v_mov_b32 v{ga+6}, s74')
        e(f'v_mov_b32 v{ga+7}, s75')
        va = 'v56' if pr == 0 else 'v57'
        if pr == 0: a.vm_wait(mk_clr)
        if not c.NOA:
            e(f'buffer_store_dwordx4 v[{ga}:{ga+3}], {va}, {SWS}, 0 offen {c.LST}')
            e(f'buffer_store_dwordx4 v[{ga+4}:{ga+7}], {va}, {SWS}, 0 offen offset:256 {c.LST}')
    e('s_lshl_b32 s13, s4, 3')
    e('s_add_u32 s13, s13, s6')
    e('s_lshl_b32 s13, s13, 14')
    if QRAW: e(f's_add_u32 s13, s13, {QRAW}')
    e('v_lshlrev_b32 v14, 9, v2')
    e('v_lshl_add_u32 v14, v3, 4, v14')
    e('v_add_u32 v14, s13, v14')
    e('v_lshlrev_b32 v15, 7, v2')
    e('v_bfe_u32 v10, v1, 2, 1')
    e('v_lshl_add_u32 v15, v10, 6, v15')
    e('v_bfe_u32 v10, v1, 3, 1')
    e('v_lshl_add_u32 v15, v10, 3, v15')
    e('v_and_b32 v10, 3, v1')
    e('v_lshl_add_u32 v15, v10, 1, v15')
    groups = []
    for n in range(8):
        lds = []; qs = []
        for ab in range(2):
            r = 64 + 8 * n + 4 * ab
            lds.append(f'buffer_load_dwordx4 v[{r}:{r+3}], v14, {SWS}, {sT(n//2)} offen offset:{(n%2)*2048 + ab*256} sc1')
            qs.append(r)
        groups.append((lds, qs))
    def q_pub_b():
        for pr in range(2):
            ga = 40 + pr * 8; va = 'v56' if pr == 0 else 'v57'
            e(f'buffer_store_dwordx4 v[{ga}:{ga+3}], {va}, {SWS}, s12 offen sc1')
            e(f'buffer_store_dwordx4 v[{ga+4}:{ga+7}], {va}, {SWS}, s12 offen offset:256 sc1')
    masked_poll('poll0', groups, 'tag', [10, 11], c.SLP0, ('v14',), c.RA0, q_pub_b)
    stamp(3)
    for uu in range(2):
        d = 32 + 4 * uu
        def qv(n, rr): return 64 + 8 * n + (rr >> 1) * 4 + (rr & 1)
        for r in range(4): e(f'v_add_f32 v{d+r}, v{qv(uu,r)}, v{qv(2+uu,r)}')
        for r in range(4): e(f'v_add_f32 v{d+r}, v{d+r}, v{qv(4+uu,r)}')
        for r in range(4): e(f'v_add_f32 v{d+r}, v{d+r}, v{qv(6+uu,r)}')
        e(f'v_cvt_pk_bf16_f32 v{60+2*uu}, v{d}, v{d+1}')
        e(f'v_cvt_pk_bf16_f32 v{61+2*uu}, v{d+2}, v{d+3}')
        o = L_QS + uu * 512
        e(f'ds_write_b16 v15, v{60+2*uu} offset:{o}')
        e(f'ds_write_b16_d16_hi v15, v{60+2*uu} offset:{o+16}')
        e(f'ds_write_b16 v15, v{61+2*uu} offset:{o+32}')
        e(f'ds_write_b16_d16_hi v15, v{61+2*uu} offset:{o+48}')
    for idx in range(c.NI0, c.X):
        if idx - c.NI0 >= c.N0: a.vm_pace(c.N0)
        issue(idx)
    stamp(4)
    e('s_waitcnt lgkmcnt(0)')
    e('s_barrier')
    e('s_branch L_main')
    a.vq = saved_vq
    a.label('L_others', pad=False)
    for idx in range(c.NI, c.X):
        a.vm_pace(c.N)
        issue(idx)
        if idx == c.WOI:
            exec_if_wave('ge', 4)
            for t in range(4):
                e(f'buffer_load_dwordx4 v[{32+4*t}:{35+4*t}], v12, {SWO}, {sT(2*t)} offen {c.WNT}')
            mk_wo = a.vm_mark()
            e('s_mov_b64 exec, -1')
    stamp(4)
    a.vm_wait(mk_wo)
    exec_if_wave('ge', 4)
    for t in range(4): e(f'ds_write_b128 v13, v[{32+4*t}:{35+4*t}] offset:{1024*t}')
    e('s_mov_b64 exec, -1')
    e('s_waitcnt lgkmcnt(0)')
    e('s_barrier')
    a.label('L_main', pad=False)
    stamp(2)
    scale = 128 ** -0.5; log2e = math.log2(math.e)
    cexp = log2e if c.MIMIC else scale * log2e
    def c_qfrag():
        e('v_lshrrev_b32 v14, 2, v3')
        e('v_lshlrev_b32 v14, 8, v14')
        e('v_lshl_add_u32 v14, v2, 4, v14')
        e('v_and_b32 v15, 1, v1')
        e('v_lshl_add_u32 v14, v15, 6, v14')
        for hf in range(2):
            e(f'ds_read_b128 v[{16+4*hf}:{19+4*hf}], v14 offset:{L_QS + hf*128}')
        e(f's_mov_b32 s24, {f32(scale):#x}')
        e('s_mov_b32 s25, 0xffff0000')
        e(f's_mov_b32 s26, {f32(cexp):#x}')
        e('s_waitcnt lgkmcnt(0)')
    def qk(t):
        swait(4 * t + 3)
        s = 32 + 4 * t
        y = 24 + 4 * (t % 2)
        for sub in range(2):
            d = s if sub == 0 else y
            for hf in range(2):
                r = kreg(t, sub * 2 + hf)
                cc = '0' if hf == 0 else f'v[{d}:{d+3}]'
                e(f'v_mfma_f32_16x16x32_bf16 v[{d}:{d+3}], v[{r}:{r+3}], v[{16+4*hf}:{19+4*hf}], {cc}')
    def qkfix(t):
        s = 32 + 4 * t
        y = 24 + 4 * (t % 2)
        for r in range(4): e(f'v_permlane32_swap_b32 v{s+r}, v{y+r}')
        for r in range(4): e(f'v_mov_b32_dpp v{s+r}, v{s+r} quad_perm:[0,0,2,2] row_mask:0xf bank_mask:0xf')
        for r in range(4): e(f'v_add_f32_dpp v{s+r}, v{y+r}, v{s+r} quad_perm:[1,1,3,3] row_mask:0xf bank_mask:0xf')
        if c.MIMIC:
            for step in range(8):
                for p in range(2):
                    x0 = s + 2 * p; x1 = x0 + 1; tt = 10 + p
                    e([f'v_cvt_pk_bf16_f32 v{tt}, v{x0}, v{x1}',
                       f'v_lshlrev_b32 v{x0}, 16, v{tt}',
                       f'v_and_b32 v{x1}, s25, v{tt}',
                       f'v_mul_f32 v{x0}, s24, v{x0}',
                       f'v_mul_f32 v{x1}, s24, v{x1}',
                       f'v_cvt_pk_bf16_f32 v{tt}, v{x0}, v{x1}',
                       f'v_lshlrev_b32 v{x0}, 16, v{tt}',
                       f'v_and_b32 v{x1}, s25, v{tt}'][step])
        if t == 0:
            e(f'v_max3_f32 v8, v{s}, v{s+1}, v{s+2}')
            e(f'v_max_f32 v8, v8, v{s+3}')
        else:
            e(f'v_max3_f32 v8, v8, v{s}, v{s+1}')
            e(f'v_max3_f32 v8, v8, v{s+2}, v{s+3}')
    def c_max():
        e('v_mov_b32 v9, v8')
        e('v_permlane32_swap_b32 v8, v9')
        e('v_max_f32 v8, v8, v9')
        e('v_mov_b32 v9, v8')
        e('v_permlane16_swap_b32 v8, v9')
        e('v_max_f32 v8, v8, v9')
        e('v_mul_f32 v8, s26, v8')
        e('v_sub_f32 v10, 0, v8')
        e('v_mov_b32 v9, 0')
        e('v_mov_b32 v11, 0')
    def c_exp(t):
        for r in range(4): e(f'v_fma_f32 v{32+4*t+r}, v{32+4*t+r}, s26, v10')
        for r in range(4): e(f'v_exp_f32 v{32+4*t+r}, v{32+4*t+r}')
        for r in range(4):
            idx = 4 * t + r
            s = 32 + idx; pb = 192 + 2 * idx
            la = 9 if idx % 2 == 0 else 11
            e(f'v_add_f32 v{la}, v{la}, v{s}')
            e(f'v_cvt_pk_bf16_f32 v{s}, v{s}, v{s}')
            e(f'v_and_b32 v{pb}, v6, v{s}')
            e(f'v_and_b32 v{pb+1}, v7, v{s}')
    def c_lred():
        e('v_add_f32 v9, v9, v11')
        e('v_mov_b32 v11, v9')
        e('v_permlane32_swap_b32 v9, v11')
        e('v_add_f32 v9, v9, v11')
        e('v_mov_b32 v11, v9')
        e('v_permlane16_swap_b32 v9, v11')
        e('v_add_f32 v9, v9, v11')
        stamp(5)
        e('s_lshl_b32 s13, s3, 11')
        e('v_lshlrev_b32 v29, 4, v1')
        e('v_add_u32 v16, s13, v29')
        e('s_lshl_b32 s13, s3, 3')
        e('v_add_u32 v17, s13, v29')
        e('s_mov_b32 exec_lo, 0x1111')
        e('s_mov_b32 exec_hi, 0')
        e(f'ds_write_b64 v17, v[8:9] offset:{L_ML}')
        e('s_mov_b64 exec, -1')
    def c_prep():
        e('s_and_b32 s11, s3, 1')
        e('v_and_b32 v18, 1, v1')
        e('v_lshlrev_b32 v18, 10, v18')
        e('v_bfe_u32 v10, v1, 1, 2')
        e('v_lshl_add_u32 v18, v10, 8, v18')
        e('v_bfe_u32 v10, v1, 3, 2')
        e('v_lshl_add_u32 v18, v10, 4, v18')
        e('v_lshrrev_b32 v10, 5, v1')
        e('s_lshl_b32 s13, s11, 1')
        e('v_add_u32 v10, s13, v10')
        e('v_lshl_add_u32 v18, v10, 6, v18')
        e('v_lshlrev_b32 v19, 6, v10')
        addr_p1('v20', 'v21', 'v10', 's11')
        e('s_cmp_lt_u32 s3, 4')
        e('s_cbranch_scc1 L_prep03')
        e('v_mul_u32_u24 v10, 4128, v2')
        e('v_lshl_add_u32 v10, v3, 1, v10')
        e('s_and_b32 s14, s3, 3')
        e('s_lshl_b32 s13, s14, 5')
        e('v_add_u32 v10, s13, v10')
        for kk in range(4):
            for half in range(2):
                for r in range(4):
                    e(f'ds_read_u16 v{32 + (kk*2+half)*4 + r}, v10 offset:{L_WO + (8*r + 4*half + kk)*128}')
        e('s_lshl_b32 s13, s14, 12')
        e('v_add_u32 v11, s13, v29')
        e('s_waitcnt lgkmcnt(0)')
        for n in range(16): e(f'v_lshl_or_b32 v{32+n}, v{33+2*n}, 16, v{32+2*n}')
        for q4 in range(4): e(f'ds_write_b128 v11, v[{32+4*q4}:{35+4*q4}] offset:{L_WOF + 1024*q4}')
        e('s_branch L_pv')
        a.label('L_prep03', pad=False)
        e('v_and_b32 v10, 7, v1')
        e('v_lshlrev_b32 v22, 7, v10')
        e('v_lshl_add_u32 v22, v2, 5, v22')
        e('v_bfe_u32 v11, v1, 3, 1')
        e('v_lshl_add_u32 v22, v11, 4, v22')
        e('s_lshl_b32 s13, s10, 14')
        e('s_lshl_b32 s14, s3, 10')
        e('s_add_u32 s13, s13, s14')
        e(f's_add_u32 s13, s13, {PART1}')
        e('v_add_u32 v22, s13, v22')
        e('s_lshl_b32 s13, s10, 10')
        e('s_lshl_b32 s14, s3, 8')
        e('s_add_u32 s13, s13, s14')
        e(f's_add_u32 s13, s13, {MLG}')
        e('v_lshlrev_b32 v23, 5, v10')
        e('v_add_u32 v23, s13, v23')
        e('v_lshlrev_b32 v25, 3, v1')
        e('s_lshl_b32 s13, s3, 9')
        e('v_add_u32 v24, s13, v25')
        e('v_lshlrev_b32 v26, 17, v10')
        e('v_lshl_add_u32 v26, v2, 4, v26')
        e('s_lshl_b32 s13, s9, 2')
        e('s_add_u32 s13, s13, s3')
        e('s_lshl_b32 s13, s13, 12')
        e('s_lshl_b32 s14, s10, 6')
        e('s_add_u32 s13, s13, s14')
        e(f's_add_u32 s13, s13, {INBOX2}')
        e('v_add_u32 v26, s13, v26')
        addr_inbox('v27')
        e('s_lshl_b32 s13, s2, 5')
        e('v_lshlrev_b32 v28, 3, v1')
        e('v_add_u32 v28, s13, v28')
        e('s_lshl_b32 s13, s3, 12')
        e('v_add_u32 v30, s13, v29')
        a.label('L_pv', pad=False)
    def wreg(kk, half): return 32 + (kk * 2 + half) * 2
    def pv(i):
        t, rr = i // 4, i % 4
        swait(32 + i)
        vr = vreg(t, rr); pb = 192 + 2 * i
        for half in range(2):
            d = 48 + 4 * half
            cc = '0' if i == 0 else f'v[{d}:{d+3}]'
            e(f'v_mfma_f32_16x16x16_bf16 v[{d}:{d+3}], v[{vr+2*half}:{vr+2*half+1}], v[{pb}:{pb+1}], {cc}')
    N2 = c.N2
    chunks = [(c.X, 1, c_qfrag)]
    for t in range(8):
        chunks.append((4 * t + 3 + N2, 1, (lambda t=t: qk(t))))
        if t: chunks.append((0, 2, (lambda t=t: qkfix(t - 1))))
    chunks.append((0, 3, lambda: qkfix(7)))
    chunks.append((0, 1, c_max))
    for t in range(8): chunks.append((0, 2, (lambda t=t: c_exp(t))))
    chunks.append((0, 1, c_lred))
    chunks.append((0, 4, c_prep))
    BUD = c.BUD
    ci = 0; pvi = 0
    qk_done_upto = -1
    for idx in range(c.X, 64):
        if idx >= 48:
            need_t = (idx - 48) // 4
            while ci < len(chunks) and ci <= 2 * need_t + 1:
                chunks[ci][2](); ci += 1
        a.vm_pace(N2)
        issue(idx)
        bud = BUD
        while ci < len(chunks) and chunks[ci][0] <= idx and bud > 0:
            bud -= chunks[ci][1]; chunks[ci][2](); ci += 1
        if ci == len(chunks):
            n = 0
            while pvi < 32 and 32 + pvi <= idx - N2 and n < c.PVR:
                pv(pvi); pvi += 1; n += 1
    while ci < len(chunks):
        chunks[ci][2](); ci += 1
    while pvi < 32:
        pv(pvi); pvi += 1
    stamp(6)
    e(f'ds_write_b128 v16, v[48:51] offset:{L_ACC}')
    e(f'ds_write_b128 v16, v[52:55] offset:{L_ACC+1024}')
    e('s_waitcnt lgkmcnt(0)')
    e('s_barrier')
    e('s_cmp_ge_u32 s3, 6')
    e(f's_cbranch_scc1 {LEND}')
    e('s_bitcmp1_b32 s3, 1')
    e('s_cbranch_scc1 L_stageC')
    for j in range(4): e(f'ds_read_b128 v[{64+4*j}:{67+4*j}], v19 offset:{L_ML + 16*j}')
    for w in range(8): e(f'ds_read_b128 v[{80+4*w}:{83+4*w}], v18 offset:{L_ACC + w*2048}')
    e('s_waitcnt lgkmcnt(8)')
    e('v_max3_f32 v8, v64, v66, v68')
    e('v_max3_f32 v9, v70, v72, v74')
    e('v_max3_f32 v8, v8, v76, v78')
    e('v_max_f32 v8, v8, v9')
    for w in range(8): e(f'v_sub_f32 v{64+2*w}, v{64+2*w}, v8')
    for w in range(8): e(f'v_exp_f32 v{64+2*w}, v{64+2*w}')
    e('v_mul_f32 v9, v64, v65')
    for w in range(1, 8): e(f'v_fmac_f32 v9, v{64+2*w}, v{65+2*w}')
    e('s_waitcnt lgkmcnt(0)')
    for r in range(4): e(f'v_mul_f32 v{56+r}, v64, v{80+r}')
    for w in range(1, 8):
        for r in range(4): e(f'v_fmac_f32 v{56+r}, v{64+2*w}, v{80+4*w+r}')
    for r in range(4): e(f'v_min_u32 v{56+r}, -2, v{56+r}')
    e('v_min_u32 v8, -2, v8')
    e('v_min_u32 v9, -2, v9')
    e('s_cmp_ge_u32 s3, 4')
    e('s_cbranch_scc1 L_stageAB')
    if not c.NOA: e(f'buffer_store_dwordx4 v[56:59], v20, {SWS}, 0 offen {c.LST}')
    e('s_mov_b32 exec_lo, 0x01010101')
    e('s_mov_b32 exec_hi, 0x01010101')
    if not c.NOA: e(f'buffer_store_dwordx2 v[8:9], v21, {SWS}, 0 offen {c.LST}')
    e('s_mov_b64 exec, -1')
    stamp(7)
    a.label('L_stageC', pad=False)
    for q4 in range(4): e(f'ds_read_b128 v[{32+4*q4}:{35+4*q4}], v30 offset:{L_WOF + 1024*q4}')
    groups = [([f'buffer_load_dwordx4 v[{64+4*s}:{67+4*s}], v22, {SWS}, {sT(s)} offen sc1'], [64 + 4 * s]) for s in range(4)]
    groups.append(([f'buffer_load_dwordx4 v[80:83], v23, {SWS}, 0 offen sc1', f'buffer_load_dwordx4 v[84:87], v23, {SWS}, 0 offen offset:16 sc1'], [80, 84]))
    masked_poll('poll1', groups, 'sent', [12, 13, 10, 11], c.SLP1, ('v22', 'v23'), c.RA1)
    stamp(8)
    e('v_max3_f32 v8, v80, v82, v84')
    e('v_max_f32 v8, v8, v86')
    for s in range(4): e(f'v_sub_f32 v{80+2*s}, v{80+2*s}, v8')
    for s in range(4): e(f'v_exp_f32 v{80+2*s}, v{80+2*s}')
    e('v_mul_f32 v9, v80, v81')
    for s in range(1, 4): e(f'v_fmac_f32 v9, v{80+2*s}, v{81+2*s}')
    e('v_rcp_f32 v9, v9')
    for r in range(4): e(f'v_mul_f32 v{56+r}, v80, v{64+r}')
    for s in range(1, 4):
        for r in range(4): e(f'v_fmac_f32 v{56+r}, v{80+2*s}, v{64+4*s+r}')
    for r in range(4): e(f'v_mul_f32 v{56+r}, v{56+r}, v9')
    e('v_cvt_pk_bf16_f32 v60, v56, v57')
    e('v_cvt_pk_bf16_f32 v61, v58, v59')
    e(f'ds_write_b64 v24, v[60:61] offset:{L_BX}')
    e('s_waitcnt lgkmcnt(0)')
    e('s_barrier')
    for kk in range(4): e(f'ds_read_b64 v[{64+2*kk}:{65+2*kk}], v25 offset:{L_BX + kk*512}')
    e('s_waitcnt lgkmcnt(0)')
    for kk in range(4):
        for half in range(2):
            d = 48 + 4 * half; w = wreg(kk, half)
            cc = '0' if kk == 0 else f'v[{d}:{d+3}]'
            e(f'v_mfma_f32_16x16x16_bf16 v[{d}:{d+3}], v[{w}:{w+1}], v[{64+2*kk}:{65+2*kk}], {cc}')
    e('v_mov_b32 v58, s74')
    e('v_mov_b32 v59, s75')
    e('v_mov_b32 v62, s74')
    e('v_mov_b32 v63, s75')
    for r in range(4): e(f'v_add_f32_dpp v{56+(r>>1)*4+(r&1)}, v{52+r}, v{48+r} row_shl:8 row_mask:0xf bank_mask:0xf bound_ctrl:0')
    e('s_mov_b32 exec_lo, 0x00ff00ff')
    e('s_mov_b32 exec_hi, 0x00ff00ff')
    e(f'buffer_store_dwordx4 v[56:59], v26, {SWS}, 0 offen sc1')
    e(f'buffer_store_dwordx4 v[60:63], v26, {SWS}, 0 offen offset:2048 sc1')
    e('s_mov_b64 exec, -1')
    stamp(9)
    e('s_cmp_lg_u32 s3, 0')
    e(f's_cbranch_scc1 {LEND}')
    groups = [([f'buffer_load_dwordx4 v[{72+4*j}:{75+4*j}], v27, {SWS}, 0 offen offset:{1024*j} sc1' for j in (hh, hh + 2)], [72 + 4 * hh, 80 + 4 * hh]) for hh in range(2)]
    masked_poll('poll2', groups, 'tag', [8, 9], c.SLP2)
    stamp(10)
    e('v_add_f32 v64, v72, v76')
    e('v_add_f32 v65, v73, v77')
    e('v_add_f32 v66, v80, v84')
    e('v_add_f32 v67, v81, v85')
    for r in range(4): e(f'v_add_f32_dpp v{68+r}, v{64+r}, v{64+r} row_ror:8 row_mask:0xf bank_mask:0xf')
    for r in range(4): e(f'v_add_f32_dpp v{64+r}, v{68+r}, v{68+r} row_ror:4 row_mask:0xf bank_mask:0xf')
    for r in range(4): e(f'v_mov_b32 v{68+r}, v{64+r}')
    for r in range(4): e(f'v_permlane16_swap_b32 v{64+r}, v{68+r}')
    for r in range(4): e(f'v_add_f32 v{64+r}, v{64+r}, v{68+r}')
    for r in range(4): e(f'v_mov_b32 v{68+r}, v{64+r}')
    for r in range(4): e(f'v_permlane32_swap_b32 v{64+r}, v{68+r}')
    for r in range(4): e(f'v_add_f32 v{64+r}, v{64+r}, v{68+r}')
    e('v_cvt_pk_bf16_f32 v60, v64, v65')
    e('v_cvt_pk_bf16_f32 v61, v66, v67')
    e('v_mov_b32 v62, s74')
    e('v_mov_b32 v63, s75')
    e(f'v_mov_b32 v8, {EPOCH}')
    e('s_mov_b32 exec_lo, 0xf')
    e('s_mov_b32 exec_hi, 0')
    e(f'buffer_store_dwordx2 v[60:61], v28, {SOUT}, 0 offen')
    e('s_cmp_eq_u32 s2, 0')
    e('s_cselect_b32 exec_lo, 1, 0')
    e(f'buffer_store_dwordx2 v[62:63], v8, {SWS}, 0 offen')
    e(f's_branch {LEND}')
    a.label('L_stageAB', pad=False)
    e(f'buffer_store_dwordx4 v[56:59], v20, {SWS}, s12 offen sc1')
    e('s_mov_b32 exec_lo, 0x01010101')
    e('s_mov_b32 exec_hi, 0x01010101')
    e(f'buffer_store_dwordx2 v[8:9], v21, {SWS}, s12 offen sc1')
    if c.STAMPS:
        a.label('L_dump', pad=True)
        stamp(11)
        e('s_mov_b32 exec_lo, 1')
        e('s_mov_b32 exec_hi, 0')
        e('s_waitcnt lgkmcnt(0)')
        e('s_lshl_b32 s13, s2, 10')
        e('s_lshl_b32 s14, s3, 7')
        e('s_add_u32 s13, s13, s14')
        e(f's_add_u32 s13, s13, {STAMP}')
        e('v_mov_b32 v8, s13')
        for k2 in range(6):
            for j in range(4): e(f'v_mov_b32 v{64+j}, s{76+4*k2+j}')
            e(f'buffer_store_dwordx4 v[64:67], v8, {SWS}, 0 offen offset:{16*k2}')
            e('s_nop 1')
    a.label('L_end', pad=False)
    e('s_endpgm')
    return a

HEADER = """; GQA decode (B=8,Hq=32,Hkv=8,Sk=4096,Dh=128,D=512), single launch, generated by gen.py
; @launch grid=(256,1,1) block=(512,1,1) lds=%d
.amdgcn_target "amdgcn-amd-amdhsa--gfx950"
.text
"""
def footer(nm, sg):
    return f""".section .rodata,"a"
.p2align 6
.amdhsa_kernel {nm}
  .amdhsa_next_free_vgpr 256
  .amdhsa_next_free_sgpr {sg}
  .amdhsa_accum_offset 256
  .amdhsa_group_segment_fixed_size 0
  .amdhsa_kernarg_size 64
  .amdhsa_user_sgpr_count 2
  .amdhsa_user_sgpr_kernarg_segment_ptr 1
  .amdhsa_system_sgpr_workgroup_id_x 1
.end_amdhsa_kernel
"""
if __name__ == '__main__':
    c = Cfg()
    out = sys.argv[1]
    for kv in sys.argv[2:]:
        k, v = kv.split('=')
        setattr(c, k, int(v) if v.lstrip('-').isdigit() else v)
    for k in ('NT','WNT','LST'):
        v = getattr(c, k)
        setattr(c, k, '' if v == 'none' else v.replace('+', ' '))
    a = gen(c)
    open(out, 'w').write(HEADER % LDS_BYTES + a.text() + footer(c.NAME, 102))
    print('instr lines', len(a.lines), 'nops', a.nops, 'lds', LDS_BYTES)
```

```python
import sys, struct, math, os
from asmlib import Asm
def f32(x): return struct.unpack('<I', struct.pack('<f', x))[0]

class Cfg:
    NI = 4
    NI0 = 16
    X = 24
    WOI = 8
    BUD = 3
    PVR = 3
    N = 4
    N0 = 12
    N2 = 4
    MIMIC = 1
    STAMPS = 0
    NT = 'nt'
    WNT = 'nt'
    NAME = 'standalone__gqa_block_cached__decode_kernel'
    SPIN = 200000
    SLP0 = 2
    RA0 = 24
    RA1 = 24
    NOA = 0
    DBGT = 0
    LST = 'none'
    SLP1 = 2
    SLP2 = 2

QRAW = 0
PART1 = 1 << 20
MLG = (1 << 20) + (1 << 19)
INBOX2 = 2 << 20
EPOCH = (3 << 20) + 4096
STAMP = 128 << 20
BOFF = 4 << 20
L_QP = 0
L_ACC = 0
L_WO = 32768
L_QS = 49408
L_ML = 50432
L_BX = 50688
L_WOF = 52736
LDS_BYTES = 52736 + 16384

SX, SK, SV, SWQ, SWO, SOUT, SDBG, SWS = ['s[%d:%d]' % (b, b + 3) for b in (32, 36, 40, 44, 48, 52, 56, 60)]
def sT(t): return '0' if t == 0 else 's%d' % (64 + t)

def gen(c):
    a = Asm(); e = a.e
    nm = c.NAME
    LEND = 'L_dump' if c.STAMPS else 'L_end'
    def stamp(k):
        if c.STAMPS: e(f's_memrealtime s[{76+2*k}:{77+2*k}]')
    def exec_if_wave(cmp, val, lo='-1', hi='-1'):
        e(f's_cmp_{cmp}_u32 s3, {val}')
        e(f's_cselect_b32 exec_lo, {lo}, 0')
        e(f's_cselect_b32 exec_hi, {hi}, 0')
    MASKS = [0, 24, 26, 28, 30, 56, 58, 14]
    def masked_poll(name, groups, kind, tmp, slp, tog=(), ra=0, hook=None):
        for gi in range(len(groups)): e(f's_mov_b64 s[{MASKS[gi]}:{MASKS[gi]+1}], -1')
        e(f's_mov_b32 s73, {c.SPIN}')
        a.label(f'L_{name}', pad=False)
        for gi, (loads, quads) in enumerate(groups):
            m = MASKS[gi]
            e(f's_mov_b64 exec, s[{m}:{m+1}]')
            e(f's_cbranch_execz L_{name}_s{gi}')
            for l in loads: e(l)
            a.label(f'L_{name}_s{gi}', pad=False)
        e('s_waitcnt vmcnt(0)')
        for gi, (loads, quads) in enumerate(groups):
            m = MASKS[gi]
            t = tmp[gi % len(tmp)]
            e(f's_mov_b64 exec, s[{m}:{m+1}]')
            if kind == 'tag':
                for q in quads:
                    e(f'v_xor_b32 v{q+2}, s74, v{q+2}')
                    e(f'v_xor_b32 v{q+3}, s75, v{q+3}')
                if len(quads) == 1:
                    e(f'v_or_b32 v{t}, v{quads[0]+2}, v{quads[0]+3}')
                else:
                    e(f'v_or3_b32 v{t}, v{quads[0]+2}, v{quads[0]+3}, v{quads[1]+2}')
                    e(f'v_or_b32 v{t}, v{t}, v{quads[1]+3}')
                e(f'v_cmp_ne_u32 s[{m}:{m+1}], 0, v{t}')
            else:
                regs = [q + r for q in quads for r in range(4)]
                e(f'v_max3_u32 v{t}, v{regs[0]}, v{regs[1]}, v{regs[2]}')
                k = 3
                while k < len(regs):
                    if k + 1 < len(regs):
                        e(f'v_max3_u32 v{t}, v{t}, v{regs[k]}, v{regs[k+1]}'); k += 2
                    else:
                        e(f'v_max_u32 v{t}, v{t}, v{regs[k]}'); k += 1
                e(f'v_cmp_eq_u32 s[{m}:{m+1}], -1, v{t}')
        e('s_mov_b64 exec, -1')
        e(f's_or_b64 vcc, s[{MASKS[0]}:{MASKS[0]+1}], s[{MASKS[1]}:{MASKS[1]+1}]')
        for gi in range(2, len(groups)): e(f's_or_b64 vcc, vcc, s[{MASKS[gi]}:{MASKS[gi]+1}]')
        e(f's_cbranch_scc0 L_{name}_done')
        e(f's_sleep {slp}')
        if hook:
            e(f's_cmp_lg_u32 s73, {c.SPIN - ra}')
            e(f's_cbranch_scc1 L_{name}_nohook')
            hook()
            a.label(f'L_{name}_nohook', pad=False)
        if tog:
            e(f's_cmp_le_u32 s73, {c.SPIN - ra}')
            e(f's_cselect_b32 s13, {BOFF}, 0')
            for v in tog: e(f'v_xor_b32 {v}, s13, {v}')
        e('s_sub_u32 s73, s73, 1')
        e('s_cmp_lg_u32 s73, 0')
        e(f's_cbranch_scc1 L_{name}')
        a.label(f'L_{name}_done', pad=False)
        if hook:
            e(f's_cmp_lt_u32 s73, {c.SPIN - ra}')
            e(f's_cbranch_scc1 L_{name}_nohook2')
            hook()
            a.label(f'L_{name}_nohook2', pad=False)
    a.raw(f'.globl {nm}\n.p2align 8\n.type {nm},@function\n{nm}:')
    e('s_cmp_ge_u32 s2, 256')
    e('s_cbranch_scc1 L_end')
    e('s_load_dwordx16 s[16:31], s[0:1], 0')
    if c.DBGT: e('s_memrealtime s[98:99]')
    if c.STAMPS:
        for k in range(76, 100): e(f's_mov_b32 s{k}, 0')
    stamp(0)
    e('v_lshrrev_b32 v1, 6, v0')
    e('v_readfirstlane_b32 s3, v1')
    e('v_and_b32 v1, 63, v0')
    e('v_lshrrev_b32 v2, 4, v1')
    e('v_and_b32 v3, 15, v1')
    e('s_and_b32 s4, s2, 7')
    e('s_lshr_b32 s5, s2, 3')
    e('s_lshr_b32 s6, s5, 2')
    e('s_and_b32 s7, s5, 3')
    e('s_lshr_b32 s8, s5, 3')
    e('s_and_b32 s9, s5, 7')
    e('s_lshl_b32 s10, s4, 2')
    e('s_add_u32 s10, s10, s8')
    for t in range(1, 9): e(f's_mov_b32 s{64+t}, {t*4096}')
    e('s_lshl_b32 s11, s8, 7')
    e('s_lshl_b32 s12, s3, 4')
    e('s_add_u32 s11, s11, s12')
    e('s_lshl_b32 s12, s11, 13')
    e('s_lshl_b32 s13, s4, 10')
    e('s_add_u32 s12, s12, s13')
    e('s_lshl_b32 s13, s9, 7')
    e('s_add_u32 s12, s12, s13')
    e('v_lshrrev_b32 v8, 3, v3')
    e('v_lshl_add_u32 v8, v2, 2, v8')
    e('v_lshlrev_b32 v8, 13, v8')
    e('v_and_b32 v9, 7, v3')
    e('v_lshl_add_u32 v8, v9, 4, v8')
    e('v_add_u32 v8, s12, v8')
    e('v_lshrrev_b32 v9, 2, v3')
    e('v_lshlrev_b32 v9, 10, v9')
    e('v_lshl_add_u32 v9, v2, 3, v9')
    e('s_lshl_b32 s13, s11, 1')
    e('v_add_u32 v9, s13, v9')
    e('s_lshl_b32 s13, s6, 5')
    e('s_lshl_b32 s14, s4, 2')
    e('s_add_u32 s13, s13, s14')
    e('s_add_u32 s13, s13, s7')
    e('s_lshl_b32 s13, s13, 18')
    e('s_lshl_b32 s14, s3, 12')
    e('s_add_u32 s13, s13, s14')
    e('v_and_b32 v4, 3, v3')
    e('v_bfe_u32 v5, v3, 2, 1')
    e('v_lshl_add_u32 v4, v4, 2, v5')
    e('v_lshlrev_b32 v4, 8, v4')
    e('v_lshl_add_u32 v4, v2, 4, v4')
    e('v_lshrrev_b32 v5, 3, v3')
    e('v_lshl_add_u32 v4, v5, 6, v4')
    e('v_add_u32 v4, s13, v4')
    e('v_lshlrev_b32 v5, 4, v1')
    e('v_add_u32 v5, s13, v5')
    e('s_waitcnt lgkmcnt(0)')
    def srd(base, p, size):
        e(f's_mov_b32 s{base}, s{p}')
        e(f's_and_b32 s{base+1}, s{p+1}, 0xffff')
        e(f's_mov_b32 s{base+2}, {size}')
        e(f's_mov_b32 s{base+3}, 0x20000')
    srd(44, 22, 4 << 20); srd(32, 16, 8192)
    if c.DBGT: srd(92, 28, 256)
    e(f'buffer_load_dwordx4 v[64:67], v8, {SWQ}, 0 offen {c.WNT}')
    e(f'buffer_load_dwordx4 v[68:71], v8, {SWQ}, {sT(4)} offen {c.WNT}')
    e(f'buffer_load_dwordx2 v[72:73], v9, {SX}, 0 offen')
    e(f'buffer_load_dwordx2 v[74:75], v9, {SX}, {sT(1)} offen')
    mk_wq = a.vm_mark()
    srd(36, 18, 64 << 20)
    e(f's_add_u32 s14, s30, {EPOCH}')
    e('s_addc_u32 s15, s31, 0')
    e('s_load_dwordx2 s[74:75], s[14:15], 0')
    srd(48, 24, 4 << 20); srd(40, 20, 64 << 20); srd(52, 26, 8192); srd(60, 30, 256 << 20)
    for j in range(1, 8): e(f's_mov_b32 s{16+j}, {j*32768}')
    def sJ(j): return '0' if j == 0 else 's%d' % (16 + j)
    marks = {}
    issued = [0]
    def swait(idx):
        n = issued[0] - (idx + 1)
        assert n >= 0
        e(f's_waitcnt vmcnt({min(n,63)})')
    def kreg(t, kk): return 128 + 16 * t + 4 * kk
    def vreg(t, rr): return (64 + 16 * t + 4 * rr) if t < 4 else (128 + 16 * (t - 4) + 4 * rr)
    def issue(idx):
        if idx < 32:
            t, kk = idx // 4, idx % 4; r = kreg(t, kk)
            e(f'buffer_load_dwordx4 v[{r}:{r+3}], v4, {SK}, {sJ(t)} offen offset:{(kk>>1)*512 + (kk&1)*128} {c.NT}')
        else:
            t, rr = (idx - 32) // 4, idx % 4; r = vreg(t, rr)
            e(f'buffer_load_dwordx4 v[{r}:{r+3}], v5, {SV}, {sJ(t)} offen offset:{rr*1024} {c.NT}')
        marks[idx] = a.vm_mark()
        issued[0] = idx + 1
    for idx in range(c.NI): issue(idx)
    e('v_and_b32 v14, 1, v1')
    e('v_lshlrev_b32 v14, 4, v14')
    e('v_mov_b32 v15, 0xffff')
    e('v_lshlrev_b32 v15, v14, v15')
    e('v_and_b32 v14, 3, v1')
    e('v_cmp_gt_u32 vcc, 2, v14')
    e('v_cndmask_b32 v6, 0, v15, vcc')
    e('v_xor_b32 v7, v15, v6')
    e('s_and_b32 s15, s3, 3')
    e('s_lshl_b32 s13, s10, 7')
    e('s_lshl_b32 s14, s15, 5')
    e('s_add_u32 s13, s13, s14')
    e('s_lshl_b32 s13, s13, 10')
    e('s_lshl_b32 s14, s9, 7')
    e('s_add_u32 s13, s13, s14')
    e('v_lshrrev_b32 v10, 3, v1')
    e('v_and_b32 v11, 7, v1')
    e('v_lshlrev_b32 v12, 10, v10')
    e('v_lshl_add_u32 v12, v11, 4, v12')
    e('v_add_u32 v12, s13, v12')
    e('s_mul_i32 s13, s15, 4128')
    e(f's_add_u32 s13, s13, {L_WO}')
    e('v_lshlrev_b32 v13, 4, v1')
    e('v_add_u32 v13, s13, v13')
    e('v_mov_b32 v14, 0x0c0c0c0c')
    e('s_mov_b32 s13, 0x01000100')
    e('s_mov_b32 s14, 0x03020302')
    e('v_bfi_b32 v84, v6, s13, v14')
    e('v_bfi_b32 v85, v7, s13, v14')
    e('v_bfi_b32 v86, v6, s14, v14')
    e('v_bfi_b32 v87, v7, s14, v14')
    e('s_mov_b32 vcc_lo, 0')
    e('s_mov_b32 vcc_hi, -1')
    e('s_lshl_b32 s13, s3, 12')
    e('v_lshlrev_b32 v14, 4, v1')
    e('v_add_u32 v14, s13, v14')
    def addr_p1(vd, vm, vt, alpha_sgpr):
        e(f'v_lshrrev_b32 {vt}, 5, v1')
        e(f'v_lshlrev_b32 {vd}, 14, {vt}')
        e(f'v_lshlrev_b32 {vm}, 10, {vt}')
        e(f'v_bfe_u32 {vt}, v1, 3, 2')
        e(f'v_lshl_add_u32 {vd}, {vt}, 10, {vd}')
        e(f'v_lshl_add_u32 {vm}, {vt}, 8, {vm}')
        e(f'v_and_b32 {vt}, 7, v1')
        e(f'v_lshl_add_u32 {vd}, {vt}, 4, {vd}')
        e('s_lshl_b32 s13, s4, 16')
        e('s_lshl_b32 s14, s7, 12')
        e('s_add_u32 s13, s13, s14')
        e('s_lshl_b32 s14, s6, 7')
        e('s_add_u32 s13, s13, s14')
        e(f's_add_u32 s13, s13, {PART1}')
        if alpha_sgpr:
            e(f's_lshl_b32 s14, {alpha_sgpr}, 15')
            e('s_add_u32 s13, s13, s14')
        e(f'v_add_u32 {vd}, s13, {vd}')
        e('s_lshl_b32 s13, s4, 12')
        e('s_lshl_b32 s14, s6, 5')
        e('s_add_u32 s13, s13, s14')
        e('s_lshl_b32 s14, s7, 3')
        e('s_add_u32 s13, s13, s14')
        e(f's_add_u32 s13, s13, {MLG}')
        if alpha_sgpr:
            e(f's_lshl_b32 s14, {alpha_sgpr}, 11')
            e('s_add_u32 s13, s13, s14')
        e(f'v_add_u32 {vm}, s13, {vm}')
    def addr_inbox(vd):
        e('s_lshl_b32 s13, s2, 12')
        e(f's_add_u32 s13, s13, {INBOX2}')
        e(f'v_lshlrev_b32 {vd}, 4, v1')
        e(f'v_add_u32 {vd}, s13, {vd}')
    a.vm_wait(mk_wq)
    def dq(bg, aa, half): return 96 + ((bg * 2 + aa) * 2 + half) * 4
    k = 0
    for t in range(2):
        for bg in range(2):
            for aa in range(2):
                bt = 88 + 2 * (k % 4); k += 1
                xw = 72 + 2 * bg + t
                e(f'v_perm_b32 v{bt}, v{xw}, v{xw}, v{84+2*aa}')
                e(f'v_perm_b32 v{bt+1}, v{xw}, v{xw}, v{85+2*aa}')
                for half in range(2):
                    d = dq(bg, aa, half); A0 = 64 + 4 * t + 2 * half
                    cc = '0' if t == 0 else f'v[{d}:{d+3}]'
                    e(f'v_mfma_f32_16x16x16_bf16 v[{d}:{d+3}], v[{A0}:{A0+1}], v[{bt}:{bt+1}], {cc}')
    saved_vq = list(a.vq)
    e('s_cmp_lg_u32 s3, 0')
    e('s_cbranch_scc1 L_merge')
    addr_p1('v48', 'v49', 'v50', None)
    for r in range(4): e(f'v_mov_b32 v{52+r}, -1')
    e(f'v_add_u32 v50, {BOFF}, v48')
    e(f'v_add_u32 v51, {BOFF}, v49')
    for va in ('v48', 'v50'):
        e(f'buffer_store_dwordx4 v[52:55], {va}, {SWS}, 0 offen sc1')
        e(f'buffer_store_dwordx4 v[52:55], {va}, {SWS}, {sT(8)} offen sc1')
    e('s_mov_b32 exec_lo, 0x01010101')
    e('s_mov_b32 exec_hi, 0x01010101')
    for va in ('v49', 'v51'):
        e(f'buffer_store_dwordx2 v[52:53], {va}, {SWS}, 0 offen sc1')
        e(f'buffer_store_dwordx2 v[52:53], {va}, {SWS}, 0 offen offset:2048 sc1')
    mk_clr = a.vm_mark()
    e('s_mov_b64 exec, -1')
    for idx in range(c.NI, c.NI0): issue(idx)
    a.label('L_merge', pad=True)
    for bg in range(2):
        for half in range(2):
            d0 = dq(bg, 0, half); d1 = dq(bg, 1, half)
            for r in range(4): e(f'v_cndmask_b32 v{d0+r}, v{d0+r}, v{d1+r}, vcc')
            e(f'ds_write_b128 v14, v[{d0}:{d0+3}] offset:{L_QP + (bg*2+half)*1024}')
    e('s_waitcnt lgkmcnt(0)')
    e('s_barrier')
    stamp(1)
    e('s_mov_b32 s12, %d' % BOFF)
    e('s_add_u32 s74, s74, 1')
    e('s_add_u32 s75, s75, 0x9E3779B9')
    e('s_cmp_lg_u32 s3, 0')
    e('s_cbranch_scc1 L_others')
    e('v_lshlrev_b32 v14, 4, v1')
    for pr in range(2):
        for half in range(2):
            for w in range(8):
                r = 64 + (half * 8 + w) * 4
                e(f'ds_read_b128 v[{r}:{r+3}], v14 offset:{L_QP + w*4096 + (pr*2+half)*1024}')
        if pr == 0:
            e('s_lshl_b32 s13, s4, 17')
            e('s_lshl_b32 s14, s5, 9')
            e('s_add_u32 s13, s13, s14')
            if QRAW: e(f's_add_u32 s13, s13, {QRAW}')
            e('v_bfe_u32 v10, v1, 2, 2')
            e('v_lshlrev_b32 v10, 14, v10')
            e('v_lshl_add_u32 v10, v2, 6, v10')
            e('v_and_b32 v15, 3, v1')
            e('v_lshl_add_u32 v10, v15, 4, v10')
            e('v_add_u32 v56, s13, v10')
            e('v_add_u32 v57, 0x10000, v56')
        e('s_waitcnt lgkmcnt(0)')
        for half in range(2):
            dst = 32 + half * 4
            b0 = 64 + half * 32
            for r in range(4):
                e(f'v_add_f32 v{dst+r}, v{b0+r}, v{b0+4+r}')
            for w in range(2, 8):
                for r in range(4):
                    e(f'v_add_f32 v{dst+r}, v{dst+r}, v{b0+4*w+r}')
        for r in range(4): e(f'v_permlane32_swap_b32 v{32+r}, v{36+r}')
        ga = 40 + pr * 8
        e(f'v_add_f32 v{ga}, v32, v36')
        e(f'v_add_f32 v{ga+1}, v33, v37')
        e(f'v_mov_b32 v{ga+2}, s74')
        e(f'v_mov_b32 v{ga+3}, s75')
        e(f'v_add_f32 v{ga+4}, v34, v38')
        e(f'v_add_f32 v{ga+5}, v35, v39')
        e(f'v_mov_b32 v{ga+6}, s74')
        e(f'v_mov_b32 v{ga+7}, s75')
        va = 'v56' if pr == 0 else 'v57'
        if pr == 0: a.vm_wait(mk_clr)
        if not c.NOA:
            e(f'buffer_store_dwordx4 v[{ga}:{ga+3}], {va}, {SWS}, 0 offen {c.LST}')
            e(f'buffer_store_dwordx4 v[{ga+4}:{ga+7}], {va}, {SWS}, 0 offen offset:256 {c.LST}')
    e('s_lshl_b32 s13, s4, 3')
    e('s_add_u32 s13, s13, s6')
    e('s_lshl_b32 s13, s13, 14')
    if QRAW: e(f's_add_u32 s13, s13, {QRAW}')
    e('v_lshlrev_b32 v14, 9, v2')
    e('v_lshl_add_u32 v14, v3, 4, v14')
    e('v_add_u32 v14, s13, v14')
    e('v_lshlrev_b32 v15, 7, v2')
    e('v_bfe_u32 v10, v1, 2, 1')
    e('v_lshl_add_u32 v15, v10, 6, v15')
    e('v_bfe_u32 v10, v1, 3, 1')
    e('v_lshl_add_u32 v15, v10, 3, v15')
    e('v_and_b32 v10, 3, v1')
    e('v_lshl_add_u32 v15, v10, 1, v15')
    groups = []
    for n in range(8):
        lds = []; qs = []
        for ab in range(2):
            r = 64 + 8 * n + 4 * ab
            lds.append(f'buffer_load_dwordx4 v[{r}:{r+3}], v14, {SWS}, {sT(n//2)} offen offset:{(n%2)*2048 + ab*256} sc1')
            qs.append(r)
        groups.append((lds, qs))
    def q_pub_b():
        for pr in range(2):
            ga = 40 + pr * 8; va = 'v56' if pr == 0 else 'v57'
            e(f'buffer_store_dwordx4 v[{ga}:{ga+3}], {va}, {SWS}, s12 offen sc1')
            e(f'buffer_store_dwordx4 v[{ga+4}:{ga+7}], {va}, {SWS}, s12 offen offset:256 sc1')
    masked_poll('poll0', groups, 'tag', [10, 11], c.SLP0, ('v14',), c.RA0, q_pub_b)
    stamp(3)
    for uu in range(2):
        d = 32 + 4 * uu
        def qv(n, rr): return 64 + 8 * n + (rr >> 1) * 4 + (rr & 1)
        for r in range(4): e(f'v_add_f32 v{d+r}, v{qv(uu,r)}, v{qv(2+uu,r)}')
        for r in range(4): e(f'v_add_f32 v{d+r}, v{d+r}, v{qv(4+uu,r)}')
        for r in range(4): e(f'v_add_f32 v{d+r}, v{d+r}, v{qv(6+uu,r)}')
        e(f'v_cvt_pk_bf16_f32 v{60+2*uu}, v{d}, v{d+1}')
        e(f'v_cvt_pk_bf16_f32 v{61+2*uu}, v{d+2}, v{d+3}')
        o = L_QS + uu * 512
        e(f'ds_write_b16 v15, v{60+2*uu} offset:{o}')
        e(f'ds_write_b16_d16_hi v15, v{60+2*uu} offset:{o+16}')
        e(f'ds_write_b16 v15, v{61+2*uu} offset:{o+32}')
        e(f'ds_write_b16_d16_hi v15, v{61+2*uu} offset:{o+48}')
    for idx in range(c.NI0, c.X):
        if idx - c.NI0 >= c.N0: a.vm_pace(c.N0)
        issue(idx)
    stamp(4)
    e('s_waitcnt lgkmcnt(0)')
    e('s_barrier')
    e('s_branch L_main')
    a.vq = saved_vq
    a.label('L_others', pad=False)
    for idx in range(c.NI, c.X):
        a.vm_pace(c.N)
        issue(idx)
        if idx == c.WOI:
            exec_if_wave('ge', 4)
            for t in range(4):
                e(f'buffer_load_dwordx4 v[{32+4*t}:{35+4*t}], v12, {SWO}, {sT(2*t)} offen {c.WNT}')
            mk_wo = a.vm_mark()
            e('s_mov_b64 exec, -1')
    stamp(4)
    a.vm_wait(mk_wo)
    exec_if_wave('ge', 4)
    for t in range(4): e(f'ds_write_b128 v13, v[{32+4*t}:{35+4*t}] offset:{1024*t}')
    e('s_mov_b64 exec, -1')
    e('s_waitcnt lgkmcnt(0)')
    e('s_barrier')
    a.label('L_main', pad=False)
    stamp(2)
    scale = 128 ** -0.5; log2e = math.log2(math.e)
    cexp = log2e if c.MIMIC else scale * log2e
    def c_qfrag():
        e('v_lshrrev_b32 v14, 2, v3')
        e('v_lshlrev_b32 v14, 8, v14')
        e('v_lshl_add_u32 v14, v2, 4, v14')
        e('v_and_b32 v15, 1, v1')
        e('v_lshl_add_u32 v14, v15, 6, v14')
        for hf in range(2):
            e(f'ds_read_b128 v[{16+4*hf}:{19+4*hf}], v14 offset:{L_QS + hf*128}')
        e(f's_mov_b32 s24, {f32(scale):#x}')
        e('s_mov_b32 s25, 0xffff0000')
        e(f's_mov_b32 s26, {f32(cexp):#x}')
        e('s_waitcnt lgkmcnt(0)')
    def qk(t):
        swait(4 * t + 3)
        s = 32 + 4 * t
        y = 24 + 4 * (t % 2)
        for sub in range(2):
            d = s if sub == 0 else y
            for hf in range(2):
                r = kreg(t, sub * 2 + hf)
                cc = '0' if hf == 0 else f'v[{d}:{d+3}]'
                e(f'v_mfma_f32_16x16x32_bf16 v[{d}:{d+3}], v[{r}:{r+3}], v[{16+4*hf}:{19+4*hf}], {cc}')
    def qkfix(t):
        s = 32 + 4 * t
        y = 24 + 4 * (t % 2)
        for r in range(4): e(f'v_permlane32_swap_b32 v{s+r}, v{y+r}')
        for r in range(4): e(f'v_mov_b32_dpp v{s+r}, v{s+r} quad_perm:[0,0,2,2] row_mask:0xf bank_mask:0xf')
        for r in range(4): e(f'v_add_f32_dpp v{s+r}, v{y+r}, v{s+r} quad_perm:[1,1,3,3] row_mask:0xf bank_mask:0xf')
        if c.MIMIC:
            for step in range(8):
                for p in range(2):
                    x0 = s + 2 * p; x1 = x0 + 1; tt = 10 + p
                    e([f'v_cvt_pk_bf16_f32 v{tt}, v{x0}, v{x1}',
                       f'v_lshlrev_b32 v{x0}, 16, v{tt}',
                       f'v_and_b32 v{x1}, s25, v{tt}',
                       f'v_mul_f32 v{x0}, s24, v{x0}',
                       f'v_mul_f32 v{x1}, s24, v{x1}',
                       f'v_cvt_pk_bf16_f32 v{tt}, v{x0}, v{x1}',
                       f'v_lshlrev_b32 v{x0}, 16, v{tt}',
                       f'v_and_b32 v{x1}, s25, v{tt}'][step])
        if t == 0:
            e(f'v_max3_f32 v8, v{s}, v{s+1}, v{s+2}')
            e(f'v_max_f32 v8, v8, v{s+3}')
        else:
            e(f'v_max3_f32 v8, v8, v{s}, v{s+1}')
            e(f'v_max3_f32 v8, v8, v{s+2}, v{s+3}')
    def c_max():
        e('v_mov_b32 v9, v8')
        e('v_permlane32_swap_b32 v8, v9')
        e('v_max_f32 v8, v8, v9')
        e('v_mov_b32 v9, v8')
        e('v_permlane16_swap_b32 v8, v9')
        e('v_max_f32 v8, v8, v9')
        e('v_mul_f32 v8, s26, v8')
        e('v_sub_f32 v10, 0, v8')
        e('v_mov_b32 v9, 0')
        e('v_mov_b32 v11, 0')
    def c_exp(t):
        for r in range(4): e(f'v_fma_f32 v{32+4*t+r}, v{32+4*t+r}, s26, v10')
        for r in range(4): e(f'v_exp_f32 v{32+4*t+r}, v{32+4*t+r}')
        for r in range(4):
            idx = 4 * t + r
            s = 32 + idx; pb = 192 + 2 * idx
            la = 9 if idx % 2 == 0 else 11
            e(f'v_add_f32 v{la}, v{la}, v{s}')
            e(f'v_cvt_pk_bf16_f32 v{s}, v{s}, v{s}')
            e(f'v_and_b32 v{pb}, v6, v{s}')
            e(f'v_and_b32 v{pb+1}, v7, v{s}')
    def c_lred():
        e('v_add_f32 v9, v9, v11')
        e('v_mov_b32 v11, v9')
        e('v_permlane32_swap_b32 v9, v11')
        e('v_add_f32 v9, v9, v11')
        e('v_mov_b32 v11, v9')
        e('v_permlane16_swap_b32 v9, v11')
        e('v_add_f32 v9, v9, v11')
        stamp(5)
        e('s_lshl_b32 s13, s3, 11')
        e('v_lshlrev_b32 v29, 4, v1')
        e('v_add_u32 v16, s13, v29')
        e('s_lshl_b32 s13, s3, 3')
        e('v_add_u32 v17, s13, v29')
        e('s_mov_b32 exec_lo, 0x1111')
        e('s_mov_b32 exec_hi, 0')
        e(f'ds_write_b64 v17, v[8:9] offset:{L_ML}')
        e('s_mov_b64 exec, -1')
    def c_prep():
        e('s_and_b32 s11, s3, 1')
        e('v_and_b32 v18, 1, v1')
        e('v_lshlrev_b32 v18, 10, v18')
        e('v_bfe_u32 v10, v1, 1, 2')
        e('v_lshl_add_u32 v18, v10, 8, v18')
        e('v_bfe_u32 v10, v1, 3, 2')
        e('v_lshl_add_u32 v18, v10, 4, v18')
        e('v_lshrrev_b32 v10, 5, v1')
        e('s_lshl_b32 s13, s11, 1')
        e('v_add_u32 v10, s13, v10')
        e('v_lshl_add_u32 v18, v10, 6, v18')
        e('v_lshlrev_b32 v19, 6, v10')
        addr_p1('v20', 'v21', 'v10', 's11')
        e('s_cmp_lt_u32 s3, 4')
        e('s_cbranch_scc1 L_prep03')
        e('v_mul_u32_u24 v10, 4128, v2')
        e('v_lshl_add_u32 v10, v3, 1, v10')
        e('s_and_b32 s14, s3, 3')
        e('s_lshl_b32 s13, s14, 5')
        e('v_add_u32 v10, s13, v10')
        for kk in range(4):
            for half in range(2):
                for r in range(4):
                    e(f'ds_read_u16 v{32 + (kk*2+half)*4 + r}, v10 offset:{L_WO + (8*r + 4*half + kk)*128}')
        e('s_lshl_b32 s13, s14, 12')
        e('v_add_u32 v11, s13, v29')
        e('s_waitcnt lgkmcnt(0)')
        for n in range(16): e(f'v_lshl_or_b32 v{32+n}, v{33+2*n}, 16, v{32+2*n}')
        for q4 in range(4): e(f'ds_write_b128 v11, v[{32+4*q4}:{35+4*q4}] offset:{L_WOF + 1024*q4}')
        e('s_branch L_pv')
        a.label('L_prep03', pad=False)
        e('v_and_b32 v10, 7, v1')
        e('v_lshlrev_b32 v22, 7, v10')
        e('v_lshl_add_u32 v22, v2, 5, v22')
        e('v_bfe_u32 v11, v1, 3, 1')
        e('v_lshl_add_u32 v22, v11, 4, v22')
        e('s_lshl_b32 s13, s10, 14')
        e('s_lshl_b32 s14, s3, 10')
        e('s_add_u32 s13, s13, s14')
        e(f's_add_u32 s13, s13, {PART1}')
        e('v_add_u32 v22, s13, v22')
        e('s_lshl_b32 s13, s10, 10')
        e('s_lshl_b32 s14, s3, 8')
        e('s_add_u32 s13, s13, s14')
        e(f's_add_u32 s13, s13, {MLG}')
        e('v_lshlrev_b32 v23, 5, v10')
        e('v_add_u32 v23, s13, v23')
        e('v_lshlrev_b32 v25, 3, v1')
        e('s_lshl_b32 s13, s3, 9')
        e('v_add_u32 v24, s13, v25')
        e('v_lshlrev_b32 v26, 17, v10')
        e('v_lshl_add_u32 v26, v2, 4, v26')
        e('s_lshl_b32 s13, s9, 2')
        e('s_add_u32 s13, s13, s3')
        e('s_lshl_b32 s13, s13, 12')
        e('s_lshl_b32 s14, s10, 6')
        e('s_add_u32 s13, s13, s14')
        e(f's_add_u32 s13, s13, {INBOX2}')
        e('v_add_u32 v26, s13, v26')
        addr_inbox('v27')
        e('s_lshl_b32 s13, s2, 5')
        e('v_lshlrev_b32 v28, 3, v1')
        e('v_add_u32 v28, s13, v28')
        e('s_lshl_b32 s13, s3, 12')
        e('v_add_u32 v30, s13, v29')
        a.label('L_pv', pad=False)
    def wreg(kk, half): return 32 + (kk * 2 + half) * 2
    def pv(i):
        t, rr = i // 4, i % 4
        swait(32 + i)
        vr = vreg(t, rr); pb = 192 + 2 * i
        for half in range(2):
            d = 48 + 4 * half
            cc = '0' if i == 0 else f'v[{d}:{d+3}]'
            e(f'v_mfma_f32_16x16x16_bf16 v[{d}:{d+3}], v[{vr+2*half}:{vr+2*half+1}], v[{pb}:{pb+1}], {cc}')
    N2 = c.N2
    chunks = [(c.X, 1, c_qfrag)]
    for t in range(8):
        chunks.append((4 * t + 3 + N2, 1, (lambda t=t: qk(t))))
        if t: chunks.append((0, 2, (lambda t=t: qkfix(t - 1))))
    chunks.append((0, 3, lambda: qkfix(7)))
    chunks.append((0, 1, c_max))
    for t in range(8): chunks.append((0, 2, (lambda t=t: c_exp(t))))
    chunks.append((0, 1, c_lred))
    chunks.append((0, 4, c_prep))
    BUD = c.BUD
    ci = 0; pvi = 0
    qk_done_upto = -1
    for idx in range(c.X, 64):
        if idx >= 48:
            need_t = (idx - 48) // 4
            while ci < len(chunks) and ci <= 2 * need_t + 1:
                chunks[ci][2](); ci += 1
        a.vm_pace(N2)
        issue(idx)
        bud = BUD
        while ci < len(chunks) and chunks[ci][0] <= idx and bud > 0:
            bud -= chunks[ci][1]; chunks[ci][2](); ci += 1
        if ci == len(chunks):
            n = 0
            while pvi < 32 and 32 + pvi <= idx - N2 and n < c.PVR:
                pv(pvi); pvi += 1; n += 1
    while ci < len(chunks):
        chunks[ci][2](); ci += 1
    while pvi < 32:
        pv(pvi); pvi += 1
    stamp(6)
    e(f'ds_write_b128 v16, v[48:51] offset:{L_ACC}')
    e(f'ds_write_b128 v16, v[52:55] offset:{L_ACC+1024}')
    e('s_waitcnt lgkmcnt(0)')
    e('s_barrier')
    e('s_cmp_ge_u32 s3, 6')
    e(f's_cbranch_scc1 {LEND}')
    e('s_bitcmp1_b32 s3, 1')
    e('s_cbranch_scc1 L_stageC')
    for j in range(4): e(f'ds_read_b128 v[{64+4*j}:{67+4*j}], v19 offset:{L_ML + 16*j}')
    for w in range(8): e(f'ds_read_b128 v[{80+4*w}:{83+4*w}], v18 offset:{L_ACC + w*2048}')
    e('s_waitcnt lgkmcnt(8)')
    e('v_max3_f32 v8, v64, v66, v68')
    e('v_max3_f32 v9, v70, v72, v74')
    e('v_max3_f32 v8, v8, v76, v78')
    e('v_max_f32 v8, v8, v9')
    for w in range(8): e(f'v_sub_f32 v{64+2*w}, v{64+2*w}, v8')
    for w in range(8): e(f'v_exp_f32 v{64+2*w}, v{64+2*w}')
    e('v_mul_f32 v9, v64, v65')
    for w in range(1, 8): e(f'v_fmac_f32 v9, v{64+2*w}, v{65+2*w}')
    e('s_waitcnt lgkmcnt(0)')
    for r in range(4): e(f'v_mul_f32 v{56+r}, v64, v{80+r}')
    for w in range(1, 8):
        for r in range(4): e(f'v_fmac_f32 v{56+r}, v{64+2*w}, v{80+4*w+r}')
    for r in range(4): e(f'v_min_u32 v{56+r}, -2, v{56+r}')
    e('v_min_u32 v8, -2, v8')
    e('v_min_u32 v9, -2, v9')
    e('s_cmp_ge_u32 s3, 4')
    e('s_cbranch_scc1 L_stageAB')
    if not c.NOA: e(f'buffer_store_dwordx4 v[56:59], v20, {SWS}, 0 offen {c.LST}')
    e('s_mov_b32 exec_lo, 0x01010101')
    e('s_mov_b32 exec_hi, 0x01010101')
    if not c.NOA: e(f'buffer_store_dwordx2 v[8:9], v21, {SWS}, 0 offen {c.LST}')
    e('s_mov_b64 exec, -1')
    stamp(7)
    a.label('L_stageC', pad=False)
    for q4 in range(4): e(f'ds_read_b128 v[{32+4*q4}:{35+4*q4}], v30 offset:{L_WOF + 1024*q4}')
    groups = [([f'buffer_load_dwordx4 v[{64+4*s}:{67+4*s}], v22, {SWS}, {sT(s)} offen sc1'], [64 + 4 * s]) for s in range(4)]
    groups.append(([f'buffer_load_dwordx4 v[80:83], v23, {SWS}, 0 offen sc1', f'buffer_load_dwordx4 v[84:87], v23, {SWS}, 0 offen offset:16 sc1'], [80, 84]))
    masked_poll('poll1', groups, 'sent', [12, 13, 10, 11], c.SLP1, ('v22', 'v23'), c.RA1)
    stamp(8)
    e('v_max3_f32 v8, v80, v82, v84')
    e('v_max_f32 v8, v8, v86')
    for s in range(4): e(f'v_sub_f32 v{80+2*s}, v{80+2*s}, v8')
    for s in range(4): e(f'v_exp_f32 v{80+2*s}, v{80+2*s}')
    e('v_mul_f32 v9, v80, v81')
    for s in range(1, 4): e(f'v_fmac_f32 v9, v{80+2*s}, v{81+2*s}')
    e('v_rcp_f32 v9, v9')
    for r in range(4): e(f'v_mul_f32 v{56+r}, v80, v{64+r}')
    for s in range(1, 4):
        for r in range(4): e(f'v_fmac_f32 v{56+r}, v{80+2*s}, v{64+4*s+r}')
    for r in range(4): e(f'v_mul_f32 v{56+r}, v{56+r}, v9')
    e('v_cvt_pk_bf16_f32 v60, v56, v57')
    e('v_cvt_pk_bf16_f32 v61, v58, v59')
    e(f'ds_write_b64 v24, v[60:61] offset:{L_BX}')
    e('s_waitcnt lgkmcnt(0)')
    e('s_barrier')
    for kk in range(4): e(f'ds_read_b64 v[{64+2*kk}:{65+2*kk}], v25 offset:{L_BX + kk*512}')
    e('s_waitcnt lgkmcnt(0)')
    for kk in range(4):
        for half in range(2):
            d = 48 + 4 * half; w = wreg(kk, half)
            cc = '0' if kk == 0 else f'v[{d}:{d+3}]'
            e(f'v_mfma_f32_16x16x16_bf16 v[{d}:{d+3}], v[{w}:{w+1}], v[{64+2*kk}:{65+2*kk}], {cc}')
    e('v_mov_b32 v58, s74')
    e('v_mov_b32 v59, s75')
    e('v_mov_b32 v62, s74')
    e('v_mov_b32 v63, s75')
    for r in range(4): e(f'v_add_f32_dpp v{56+(r>>1)*4+(r&1)}, v{52+r}, v{48+r} row_shl:8 row_mask:0xf bank_mask:0xf bound_ctrl:0')
    e('s_mov_b32 exec_lo, 0x00ff00ff')
    e('s_mov_b32 exec_hi, 0x00ff00ff')
    e(f'buffer_store_dwordx4 v[56:59], v26, {SWS}, 0 offen sc1')
    e(f'buffer_store_dwordx4 v[60:63], v26, {SWS}, 0 offen offset:2048 sc1')
    e('s_mov_b64 exec, -1')
    stamp(9)
    e('s_cmp_lg_u32 s3, 0')
    e(f's_cbranch_scc1 {LEND}')
    groups = [([f'buffer_load_dwordx4 v[{72+4*j}:{75+4*j}], v27, {SWS}, 0 offen offset:{1024*j} sc1' for j in (hh, hh + 2)], [72 + 4 * hh, 80 + 4 * hh]) for hh in range(2)]
    masked_poll('poll2', groups, 'tag', [8, 9], c.SLP2)
    stamp(10)
    e('v_add_f32 v64, v72, v76')
    e('v_add_f32 v65, v73, v77')
    e('v_add_f32 v66, v80, v84')
    e('v_add_f32 v67, v81, v85')
    for r in range(4): e(f'v_add_f32_dpp v{68+r}, v{64+r}, v{64+r} row_ror:8 row_mask:0xf bank_mask:0xf')
    for r in range(4): e(f'v_add_f32_dpp v{64+r}, v{68+r}, v{68+r} row_ror:4 row_mask:0xf bank_mask:0xf')
    for r in range(4): e(f'v_mov_b32 v{68+r}, v{64+r}')
    for r in range(4): e(f'v_permlane16_swap_b32 v{64+r}, v{68+r}')
    for r in range(4): e(f'v_add_f32 v{64+r}, v{64+r}, v{68+r}')
    for r in range(4): e(f'v_mov_b32 v{68+r}, v{64+r}')
    for r in range(4): e(f'v_permlane32_swap_b32 v{64+r}, v{68+r}')
    for r in range(4): e(f'v_add_f32 v{64+r}, v{64+r}, v{68+r}')
    e('v_cvt_pk_bf16_f32 v60, v64, v65')
    e('v_cvt_pk_bf16_f32 v61, v66, v67')
    e('v_mov_b32 v62, s74')
    e('v_mov_b32 v63, s75')
    e(f'v_mov_b32 v8, {EPOCH}')
    e('s_mov_b32 exec_lo, 0xf')
    e('s_mov_b32 exec_hi, 0')
    e(f'buffer_store_dwordx2 v[60:61], v28, {SOUT}, 0 offen')
    e('s_cmp_eq_u32 s2, 0')
    e('s_cselect_b32 exec_lo, 1, 0')
    e(f'buffer_store_dwordx2 v[62:63], v8, {SWS}, 0 offen')
    if c.DBGT:
        e('s_memrealtime s[96:97]')
        e('s_mov_b32 exec_lo, 1')
        e('s_waitcnt lgkmcnt(0)')
        e('s_not_b32 s98, s98')
        e('v_mov_b32 v64, s98')
        e('v_mov_b32 v65, s96')
        e('v_mov_b32 v66, 0')
        e('buffer_atomic_umax v64, v66, s[92:95], 0 offen')
        e('buffer_atomic_umax v65, v66, s[92:95], 0 offen offset:4')
    e(f's_branch {LEND}')
    a.label('L_stageAB', pad=False)
    e(f'buffer_store_dwordx4 v[56:59], v20, {SWS}, s12 offen sc1')
    e('s_mov_b32 exec_lo, 0x01010101')
    e('s_mov_b32 exec_hi, 0x01010101')
    e(f'buffer_store_dwordx2 v[8:9], v21, {SWS}, s12 offen sc1')
    if c.STAMPS:
        a.label('L_dump', pad=True)
        stamp(11)
        e('s_mov_b32 exec_lo, 1')
        e('s_mov_b32 exec_hi, 0')
        e('s_waitcnt lgkmcnt(0)')
        e('s_lshl_b32 s13, s2, 10')
        e('s_lshl_b32 s14, s3, 7')
        e('s_add_u32 s13, s13, s14')
        e(f's_add_u32 s13, s13, {STAMP}')
        e('v_mov_b32 v8, s13')
        for k2 in range(6):
            for j in range(4): e(f'v_mov_b32 v{64+j}, s{76+4*k2+j}')
            e(f'buffer_store_dwordx4 v[64:67], v8, {SWS}, 0 offen offset:{16*k2}')
            e('s_nop 1')
    a.label('L_end', pad=False)
    e('s_endpgm')
    return a

HEADER = """; GQA decode (B=8,Hq=32,Hkv=8,Sk=4096,Dh=128,D=512), single launch, generated by gen.py
; @launch grid=(256,1,1) block=(512,1,1) lds=%d
.amdgcn_target "amdgcn-amd-amdhsa--gfx950"
.text
"""
def footer(nm, sg):
    return f""".section .rodata,"a"
.p2align 6
.amdhsa_kernel {nm}
  .amdhsa_next_free_vgpr 256
  .amdhsa_next_free_sgpr {sg}
  .amdhsa_accum_offset 256
  .amdhsa_group_segment_fixed_size 0
  .amdhsa_kernarg_size 64
  .amdhsa_user_sgpr_count 2
  .amdhsa_user_sgpr_kernarg_segment_ptr 1
  .amdhsa_system_sgpr_workgroup_id_x 1
.end_amdhsa_kernel
"""
if __name__ == '__main__':
    c = Cfg()
    out = sys.argv[1]
    for kv in sys.argv[2:]:
        k, v = kv.split('=')
        setattr(c, k, int(v) if v.lstrip('-').isdigit() else v)
    for k in ('NT','WNT','LST'):
        v = getattr(c, k)
        setattr(c, k, '' if v == 'none' else v.replace('+', ' '))
    a = gen(c)
    open(out, 'w').write(HEADER % LDS_BYTES + a.text() + footer(c.NAME, 102))
    print('instr lines', len(a.lines), 'nops', a.nops, 'lds', LDS_BYTES)
```

```python
import sys, struct, math, os
from asmlib import Asm
def f32(x): return struct.unpack('<I', struct.pack('<f', x))[0]

class Cfg:
    NI = 3
    NI0 = 16
    X = 20
    WOI = 8
    BUD = 3
    XB = 54
    ROT = 7
    ILV = 1
    PS1 = 1
    PS2 = 0
    PRIO = 3
    DLY = 0
    PD1 = 1
    PD2 = 1
    N3 = 4
    X3 = 48
    PVR = 3
    N = 3
    N0 = 8
    N2 = 4
    MIMIC = 1
    STAMPS = 0
    NT = 'nt'
    WNT = 'nt'
    NAME = 'standalone__gqa_block_cached__decode_kernel'
    SPIN = 200000
    SLP0 = 2
    RA0 = 16
    RA1 = 16
    NOA = 0
    DBGT = 0
    LST = 'none'
    SLP1 = 2
    SLP2 = 2

QRAW = 0
PART1 = 1 << 20
MLG = (1 << 20) + (1 << 19)
INBOX2 = 2 << 20
EPOCH = (3 << 20) + 4096
STAMP = 128 << 20
BOFF = 4 << 20
L_QP = 0
L_ACC = 0
L_WO = 32768
L_QS = 49408
L_ML = 50432
L_BX = 50688
L_WOF = 52736
LDS_BYTES = 52736 + 16384

SX, SK, SV, SWQ, SWO, SOUT, SDBG, SWS = ['s[%d:%d]' % (b, b + 3) for b in (32, 36, 40, 44, 48, 52, 56, 60)]
def sT(t): return '0' if t == 0 else 's%d' % (64 + t)

def gen(c):
    a = Asm(); e = a.e
    nm = c.NAME
    LEND = 'L_dump' if c.STAMPS else 'L_end'
    def stamp(k):
        if c.STAMPS and (c.STAMPS != 4 or k in (0, 6, 11)): e(f's_memrealtime s[{76+2*k}:{77+2*k}]')
    def exec_if_wave(cmp, val, lo='-1', hi='-1'):
        e(f's_cmp_{cmp}_u32 s3, {val}')
        e(f's_cselect_b32 exec_lo, {lo}, 0')
        e(f's_cselect_b32 exec_hi, {hi}, 0')
    MASKS = [0, 24, 26, 28, 30, 56, 58, 14]
    def masked_poll(name, groups, kind, tmp, slp, tog=(), ra=0, hook=None):
        for gi in range(len(groups)): e(f's_mov_b64 s[{MASKS[gi]}:{MASKS[gi]+1}], -1')
        e(f's_mov_b32 s73, {c.SPIN}')
        a.label(f'L_{name}', pad=False)
        for gi, (loads, quads) in enumerate(groups):
            m = MASKS[gi]
            e(f's_mov_b64 exec, s[{m}:{m+1}]')
            e(f's_cbranch_execz L_{name}_s{gi}')
            for l in loads: e(l)
            a.label(f'L_{name}_s{gi}', pad=False)
        e('s_waitcnt vmcnt(0)')
        for gi, (loads, quads) in enumerate(groups):
            m = MASKS[gi]
            t = tmp[gi % len(tmp)]
            e(f's_mov_b64 exec, s[{m}:{m+1}]')
            if kind == 'tag':
                for q in quads:
                    e(f'v_xor_b32 v{q+2}, s74, v{q+2}')
                    e(f'v_xor_b32 v{q+3}, s75, v{q+3}')
                if len(quads) == 1:
                    e(f'v_or_b32 v{t}, v{quads[0]+2}, v{quads[0]+3}')
                else:
                    e(f'v_or3_b32 v{t}, v{quads[0]+2}, v{quads[0]+3}, v{quads[1]+2}')
                    e(f'v_or_b32 v{t}, v{t}, v{quads[1]+3}')
                e(f'v_cmp_ne_u32 s[{m}:{m+1}], 0, v{t}')
            else:
                regs = [q + r for q in quads for r in range(4)]
                e(f'v_max3_u32 v{t}, v{regs[0]}, v{regs[1]}, v{regs[2]}')
                k = 3
                while k < len(regs):
                    if k + 1 < len(regs):
                        e(f'v_max3_u32 v{t}, v{t}, v{regs[k]}, v{regs[k+1]}'); k += 2
                    else:
                        e(f'v_max_u32 v{t}, v{t}, v{regs[k]}'); k += 1
                e(f'v_cmp_eq_u32 s[{m}:{m+1}], -1, v{t}')
        e('s_mov_b64 exec, -1')
        m1 = MASKS[1] if len(groups) > 1 else MASKS[0]
        e(f's_or_b64 vcc, s[{MASKS[0]}:{MASKS[0]+1}], s[{m1}:{m1+1}]')
        for gi in range(2, len(groups)): e(f's_or_b64 vcc, vcc, s[{MASKS[gi]}:{MASKS[gi]+1}]')
        e(f's_cbranch_scc0 L_{name}_done')
        e(f's_sleep {slp}')
        if hook:
            e(f's_cmp_lg_u32 s73, {c.SPIN - ra}')
            e(f's_cbranch_scc1 L_{name}_nohook')
            hook()
            a.label(f'L_{name}_nohook', pad=False)
        if tog:
            e(f's_cmp_le_u32 s73, {c.SPIN - ra}')
            e(f's_cselect_b32 s13, {BOFF}, 0')
            for v in tog: e(f'v_xor_b32 {v}, s13, {v}')
        e('s_sub_u32 s73, s73, 1')
        e('s_cmp_lg_u32 s73, 0')
        e(f's_cbranch_scc1 L_{name}')
        a.label(f'L_{name}_done', pad=False)
        if hook:
            e(f's_cmp_lt_u32 s73, {c.SPIN - ra}')
            e(f's_cbranch_scc1 L_{name}_nohook2')
            hook()
            a.label(f'L_{name}_nohook2', pad=False)
    def poll_check(groups, kind, tmp):
        for gi, (loads, quads) in enumerate(groups):
            m = MASKS[gi]
            t = tmp[(2 * gi) % len(tmp)]; t2 = tmp[(2 * gi + 1) % len(tmp)]
            e(f's_mov_b64 exec, s[{m}:{m+1}]')
            if kind == 'tag':
                e(f'v_xor_b32 v{t}, s74, v{quads[0]+2}')
                e(f'v_xor_b32 v{t2}, s75, v{quads[0]+3}')
                for q in quads[1:]:
                    e(f'v_or_b32 v{t}, v{t}, v{t2}')
                    e(f'v_xor_b32 v{t2}, s74, v{q+2}')
                    e(f'v_or_b32 v{t}, v{t}, v{t2}')
                    e(f'v_xor_b32 v{t2}, s75, v{q+3}')
                e(f'v_or_b32 v{t}, v{t}, v{t2}')
                e(f'v_cmp_ne_u32 s[{m}:{m+1}], 0, v{t}')
            else:
                regs = [q + r for q in quads for r in range(4)]
                e(f'v_max3_u32 v{t}, v{regs[0]}, v{regs[1]}, v{regs[2]}')
                k = 3
                while k < len(regs):
                    if k + 1 < len(regs):
                        e(f'v_max3_u32 v{t}, v{t}, v{regs[k]}, v{regs[k+1]}'); k += 2
                    else:
                        e(f'v_max_u32 v{t}, v{t}, v{regs[k]}'); k += 1
                e(f'v_cmp_eq_u32 s[{m}:{m+1}], -1, v{t}')
        e('s_mov_b64 exec, -1')
        if len(groups) == 1:
            e(f's_or_b64 vcc, s[{MASKS[0]}:{MASKS[0]+1}], s[{MASKS[0]}:{MASKS[0]+1}]')
        else:
            e(f's_or_b64 vcc, s[{MASKS[0]}:{MASKS[0]+1}], s[{MASKS[1]}:{MASKS[1]+1}]')
        for gi in range(2, len(groups)): e(f's_or_b64 vcc, vcc, s[{MASKS[gi]}:{MASKS[gi]+1}]')
    def pipe_poll(name, groups, kind, tmp, depth, rounds, done_label, slp=0):
        R = sum(len(l) for l, q in groups)
        for d in range(depth):
            for l, q in groups:
                for x in l: e(x)
        for gi in range(len(groups)): e(f's_mov_b64 s[{MASKS[gi]}:{MASKS[gi]+1}], -1')
        e(f's_mov_b32 s73, {rounds}')
        a.label(f'L_{name}', pad=False)
        e(f's_waitcnt vmcnt({R*(depth-1)})')
        poll_check(groups, kind, tmp)
        e(f's_cbranch_scc0 {done_label}')
        if slp: e(f's_sleep {slp}')
        for gi, (loads, quads) in enumerate(groups):
            m = MASKS[gi]
            e(f's_mov_b64 exec, s[{m}:{m+1}]')
            for l in loads: e(l)
        e('s_mov_b64 exec, -1')
        e('s_sub_u32 s73, s73, 1')
        e('s_cmp_lg_u32 s73, 0')
        e(f's_cbranch_scc1 L_{name}')
        e('s_waitcnt vmcnt(0)')
    a.raw(f'.globl {nm}\n.p2align 8\n.type {nm},@function\n{nm}:')
    e('s_cmp_ge_u32 s2, 256')
    e('s_cbranch_scc1 L_end')
    e('s_load_dwordx16 s[16:31], s[0:1], 0')
    if c.DBGT: e('s_memrealtime s[98:99]')
    if c.STAMPS:
        for k in range(76, 100): e(f's_mov_b32 s{k}, 0')
    stamp(0)
    e('v_lshrrev_b32 v1, 6, v0')
    e('v_readfirstlane_b32 s3, v1')
    e('v_and_b32 v1, 63, v0')
    e('v_lshrrev_b32 v2, 4, v1')
    e('v_and_b32 v3, 15, v1')
    e('s_and_b32 s4, s2, 7')
    e('s_lshr_b32 s5, s2, 3')
    e('s_lshr_b32 s6, s5, 2')
    e('s_and_b32 s7, s5, 3')
    e('s_lshr_b32 s8, s5, 3')
    e('s_and_b32 s9, s5, 7')
    e('s_lshl_b32 s10, s4, 2')
    e('s_add_u32 s10, s10, s8')
    for t in range(1, 9): e(f's_mov_b32 s{64+t}, {t*4096}')
    e('s_lshl_b32 s11, s8, 7')
    e('s_lshl_b32 s12, s3, 4')
    e('s_add_u32 s11, s11, s12')
    e('s_lshl_b32 s12, s11, 13')
    e('s_lshl_b32 s13, s4, 10')
    e('s_add_u32 s12, s12, s13')
    e('s_lshl_b32 s13, s9, 7')
    e('s_add_u32 s12, s12, s13')
    e('v_lshrrev_b32 v8, 3, v3')
    e('v_lshl_add_u32 v8, v2, 2, v8')
    e('v_lshlrev_b32 v8, 13, v8')
    e('v_and_b32 v9, 7, v3')
    e('v_lshl_add_u32 v8, v9, 4, v8')
    e('v_add_u32 v8, s12, v8')
    e('v_lshrrev_b32 v9, 2, v3')
    e('v_lshlrev_b32 v9, 10, v9')
    e('v_lshl_add_u32 v9, v2, 3, v9')
    e('s_lshl_b32 s13, s11, 1')
    e('v_add_u32 v9, s13, v9')
    e('s_lshl_b32 s13, s6, 5')
    e('s_lshl_b32 s14, s4, 2')
    e('s_add_u32 s13, s13, s14')
    if not c.ILV: e('s_add_u32 s13, s13, s7')
    e('s_lshl_b32 s13, s13, 18')
    if c.ILV:
        e(f's_lshl_b32 s14, s7, {15 if c.ILV == 1 else 12}')
        e('s_add_u32 s13, s13, s14')
    e(f's_lshl_b32 s14, s3, {14 if c.ILV == 2 else 12}')
    e('s_add_u32 s13, s13, s14')
    e('v_and_b32 v4, 3, v3')
    e('v_bfe_u32 v5, v3, 2, 1')
    e('v_lshl_add_u32 v4, v4, 2, v5')
    e('v_lshlrev_b32 v4, 8, v4')
    e('v_lshl_add_u32 v4, v2, 4, v4')
    e('v_lshrrev_b32 v5, 3, v3')
    e('v_lshl_add_u32 v4, v5, 6, v4')
    e('v_add_u32 v4, s13, v4')
    e('v_lshlrev_b32 v5, 4, v1')
    e('v_add_u32 v5, s13, v5')
    e('s_waitcnt lgkmcnt(0)')
    def srd(base, p, size):
        e(f's_mov_b32 s{base}, s{p}')
        e(f's_and_b32 s{base+1}, s{p+1}, 0xffff')
        e(f's_mov_b32 s{base+2}, {size}')
        e(f's_mov_b32 s{base+3}, 0x20000')
    srd(44, 22, 4 << 20); srd(32, 16, 8192)
    if c.DBGT: srd(92, 28, 256)
    e(f'buffer_load_dwordx4 v[64:67], v8, {SWQ}, 0 offen {c.WNT}')
    e(f'buffer_load_dwordx4 v[68:71], v8, {SWQ}, {sT(4)} offen {c.WNT}')
    e(f'buffer_load_dwordx2 v[72:73], v9, {SX}, 0 offen')
    e(f'buffer_load_dwordx2 v[74:75], v9, {SX}, {sT(1)} offen')
    mk_wq = a.vm_mark()
    srd(36, 18, 64 << 20)
    e(f's_add_u32 s14, s30, {EPOCH}')
    e('s_addc_u32 s15, s31, 0')
    e('s_load_dwordx2 s[74:75], s[14:15], 0')
    srd(48, 24, 4 << 20); srd(40, 20, 64 << 20); srd(52, 26, 8192); srd(60, 30, 256 << 20)
    if c.ROT == 0:
        for j in range(1, 8): e(f's_mov_b32 s{16+j}, {j*(131072 if c.ILV else 32768)}')
    else:
        if c.ROT == 1: e('s_mov_b32 s13, s5')
        elif c.ROT == 2: e('s_add_u32 s13, s5, s4')
        elif c.ROT == 3: e('s_mov_b32 s13, s4')
        elif c.ROT == 4: e('s_mov_b32 s13, s6')
        elif c.ROT == 5:
            e('s_lshl_b32 s13, s7, 1'); e('s_add_u32 s13, s13, s6'); e('s_add_u32 s13, s13, s4')
        elif c.ROT == 6:
            e('s_lshl_b32 s13, s7, 1'); e('s_add_u32 s13, s13, s6')
        elif c.ROT == 7:
            e('s_mul_i32 s13, s6, 3')
        elif c.ROT == 8:
            e('s_lshl_b32 s13, s7, 1')
        elif c.ROT == 9:
            e('s_add_u32 s13, s7, s6')
        elif c.ROT == 10:
            e('s_xor_b32 s13, s6, s4')
        elif c.ROT == 11:
            e('s_lshl_b32 s13, s4, 2'); e('s_add_u32 s13, s13, s6')
        elif c.ROT == 12:
            e('s_sub_u32 s13, 8, s6')
        elif c.ROT == 13:
            e('s_lshr_b32 s13, s6, 1'); e('s_lshl_b32 s13, s13, 1')
        for j in range(8):
            e(f's_add_u32 s14, s13, {j}')
            e('s_and_b32 s14, s14, 7')
            e(f's_lshl_b32 s{16+j}, s14, {17 if c.ILV else 15}')
    def sJ(j): return '0' if (j == 0 and c.ROT == 0) else 's%d' % (16 + j)
    marks = {}
    issued = [0]
    def swait(idx):
        n = issued[0] - (idx + 1)
        assert n >= 0
        e(f's_waitcnt vmcnt({min(n,63)})')
    def kreg(t, kk): return 128 + 16 * t + 4 * kk
    def vreg(t, rr): return (64 + 16 * t + 4 * rr) if t < 4 else (128 + 16 * (t - 4) + 4 * rr)
    def issue(idx):
        if idx < 32:
            t, kk = idx // 4, idx % 4; r = kreg(t, kk)
            e(f'buffer_load_dwordx4 v[{r}:{r+3}], v4, {SK}, {sJ(t)} offen offset:{(kk>>1)*512 + (kk&1)*128} {c.NT}')
        else:
            t, rr = (idx - 32) // 4, idx % 4; r = vreg(t, rr)
            e(f'buffer_load_dwordx4 v[{r}:{r+3}], v5, {SV}, {sJ(t)} offen offset:{rr*1024} {c.NT}')
        marks[idx] = a.vm_mark()
        issued[0] = idx + 1
    for idx in range(c.NI): issue(idx)
    e('v_and_b32 v14, 1, v1')
    e('v_lshlrev_b32 v14, 4, v14')
    e('v_mov_b32 v15, 0xffff')
    e('v_lshlrev_b32 v15, v14, v15')
    e('v_and_b32 v14, 3, v1')
    e('v_cmp_gt_u32 vcc, 2, v14')
    e('v_cndmask_b32 v6, 0, v15, vcc')
    e('v_xor_b32 v7, v15, v6')
    e('s_and_b32 s15, s3, 3')
    e('s_lshl_b32 s13, s10, 7')
    e('s_lshl_b32 s14, s15, 5')
    e('s_add_u32 s13, s13, s14')
    e('s_lshl_b32 s13, s13, 10')
    e('s_lshl_b32 s14, s9, 7')
    e('s_add_u32 s13, s13, s14')
    e('v_lshrrev_b32 v10, 3, v1')
    e('v_and_b32 v11, 7, v1')
    e('v_lshlrev_b32 v12, 10, v10')
    e('v_lshl_add_u32 v12, v11, 4, v12')
    e('v_add_u32 v12, s13, v12')
    e('s_mul_i32 s13, s15, 4128')
    e(f's_add_u32 s13, s13, {L_WO}')
    e('v_lshlrev_b32 v13, 4, v1')
    e('v_add_u32 v13, s13, v13')
    e('v_mov_b32 v14, 0x0c0c0c0c')
    e('s_mov_b32 s13, 0x01000100')
    e('s_mov_b32 s14, 0x03020302')
    e('v_bfi_b32 v84, v6, s13, v14')
    e('v_bfi_b32 v85, v7, s13, v14')
    e('v_bfi_b32 v86, v6, s14, v14')
    e('v_bfi_b32 v87, v7, s14, v14')
    e('s_mov_b32 vcc_lo, 0')
    e('s_mov_b32 vcc_hi, -1')
    e('s_lshl_b32 s13, s3, 12')
    e('v_lshlrev_b32 v14, 4, v1')
    e('v_add_u32 v14, s13, v14')
    def addr_p1(vd, vt, alpha_sgpr):
        e(f'v_lshrrev_b32 {vt}, 5, v1')
        e(f'v_lshlrev_b32 {vd}, 14, {vt}')
        e(f'v_bfe_u32 {vt}, v1, 3, 2')
        e(f'v_lshl_add_u32 {vd}, {vt}, 10, {vd}')
        e(f'v_and_b32 {vt}, 7, v1')
        e(f'v_lshl_add_u32 {vd}, {vt}, 4, {vd}')
        e('s_lshl_b32 s13, s4, 16')
        e('s_lshl_b32 s14, s7, 12')
        e('s_add_u32 s13, s13, s14')
        e('s_lshl_b32 s14, s6, 7')
        e('s_add_u32 s13, s13, s14')
        e(f's_add_u32 s13, s13, {PART1}')
        if alpha_sgpr:
            e(f's_lshl_b32 s14, {alpha_sgpr}, 15')
            e('s_add_u32 s13, s13, s14')
        e(f'v_add_u32 {vd}, s13, {vd}')
    def addr_ml(vm):
        e(f'v_lshlrev_b32 {vm}, 8, v3')
        e('s_lshl_b32 s13, s4, 12')
        e('s_lshl_b32 s14, s6, 5')
        e('s_add_u32 s13, s13, s14')
        e('s_lshl_b32 s14, s7, 3')
        e('s_add_u32 s13, s13, s14')
        e(f's_add_u32 s13, s13, {MLG}')
        e(f'v_add_u32 {vm}, s13, {vm}')
    def addr_inbox(vd):
        e('s_lshl_b32 s13, s2, 12')
        e(f's_add_u32 s13, s13, {INBOX2}')
        e(f'v_lshlrev_b32 {vd}, 4, v1')
        e(f'v_add_u32 {vd}, s13, {vd}')
    a.vm_wait(mk_wq)
    def dq(bg, aa, half): return 96 + ((bg * 2 + aa) * 2 + half) * 4
    k = 0
    for t in range(2):
        for bg in range(2):
            for aa in range(2):
                bt = 88 + 2 * (k % 4); k += 1
                xw = 72 + 2 * bg + t
                e(f'v_perm_b32 v{bt}, v{xw}, v{xw}, v{84+2*aa}')
                e(f'v_perm_b32 v{bt+1}, v{xw}, v{xw}, v{85+2*aa}')
                for half in range(2):
                    d = dq(bg, aa, half); A0 = 64 + 4 * t + 2 * half
                    cc = '0' if t == 0 else f'v[{d}:{d+3}]'
                    e(f'v_mfma_f32_16x16x16_bf16 v[{d}:{d+3}], v[{A0}:{A0+1}], v[{bt}:{bt+1}], {cc}')
    saved_vq = list(a.vq)
    e('s_cmp_lg_u32 s3, 0')
    e('s_cbranch_scc1 L_merge')
    addr_p1('v48', 'v50', None)
    addr_ml('v49')
    for r in range(4): e(f'v_mov_b32 v{52+r}, -1')
    e(f'v_add_u32 v50, {BOFF}, v48')
    e(f'v_add_u32 v51, {BOFF}, v49')
    for va in ('v48', 'v50'):
        e(f'buffer_store_dwordx4 v[52:55], {va}, {SWS}, 0 offen sc1')
        e(f'buffer_store_dwordx4 v[52:55], {va}, {SWS}, {sT(8)} offen sc1')
    e('s_mov_b32 exec_lo, 0xffff')
    e('s_mov_b32 exec_hi, 0')
    for va in ('v49', 'v51'):
        e(f'buffer_store_dwordx2 v[52:53], {va}, {SWS}, 0 offen sc1')
    mk_clr = a.vm_mark()
    e('s_mov_b64 exec, -1')
    for idx in range(c.NI, c.NI0): issue(idx)
    a.label('L_merge', pad=True)
    for bg in range(2):
        for half in range(2):
            d0 = dq(bg, 0, half); d1 = dq(bg, 1, half)
            for r in range(4): e(f'v_cndmask_b32 v{d0+r}, v{d0+r}, v{d1+r}, vcc')
            e(f'ds_write_b128 v14, v[{d0}:{d0+3}] offset:{L_QP + (bg*2+half)*1024}')
    e('s_waitcnt lgkmcnt(0)')
    e('s_barrier')
    stamp(1)
    e('s_mov_b32 s12, %d' % BOFF)
    e('s_add_u32 s74, s74, 1')
    e('s_add_u32 s75, s75, 0x9E3779B9')
    e('s_cmp_lg_u32 s3, 0')
    e('s_cbranch_scc1 L_others')
    e('v_lshlrev_b32 v14, 4, v1')
    for pr in range(2):
        for half in range(2):
            for w in range(8):
                r = 64 + (half * 8 + w) * 4
                e(f'ds_read_b128 v[{r}:{r+3}], v14 offset:{L_QP + w*4096 + (pr*2+half)*1024}')
        if pr == 0:
            e('s_lshl_b32 s13, s4, 17')
            e('s_lshl_b32 s14, s5, 9')
            e('s_add_u32 s13, s13, s14')
            if QRAW: e(f's_add_u32 s13, s13, {QRAW}')
            e('v_bfe_u32 v10, v1, 2, 2')
            e('v_lshlrev_b32 v10, 14, v10')
            e('v_lshl_add_u32 v10, v2, 6, v10')
            e('v_and_b32 v15, 3, v1')
            e('v_lshl_add_u32 v10, v15, 4, v10')
            e('v_add_u32 v56, s13, v10')
            e('v_add_u32 v57, 0x10000, v56')
        e('s_waitcnt lgkmcnt(0)')
        for half in range(2):
            dst = 32 + half * 4
            b0 = 64 + half * 32
            for r in range(4):
                e(f'v_add_f32 v{dst+r}, v{b0+r}, v{b0+4+r}')
            for w in range(2, 8):
                for r in range(4):
                    e(f'v_add_f32 v{dst+r}, v{dst+r}, v{b0+4*w+r}')
        for r in range(4): e(f'v_permlane32_swap_b32 v{32+r}, v{36+r}')
        ga = 40 + pr * 8
        e(f'v_add_f32 v{ga}, v32, v36')
        e(f'v_add_f32 v{ga+1}, v33, v37')
        e(f'v_mov_b32 v{ga+2}, s74')
        e(f'v_mov_b32 v{ga+3}, s75')
        e(f'v_add_f32 v{ga+4}, v34, v38')
        e(f'v_add_f32 v{ga+5}, v35, v39')
        e(f'v_mov_b32 v{ga+6}, s74')
        e(f'v_mov_b32 v{ga+7}, s75')
        va = 'v56' if pr == 0 else 'v57'
        if pr == 0: a.vm_wait(mk_clr)
        if not c.NOA:
            e(f'buffer_store_dwordx4 v[{ga}:{ga+3}], {va}, {SWS}, 0 offen {c.LST}')
            e(f'buffer_store_dwordx4 v[{ga+4}:{ga+7}], {va}, {SWS}, 0 offen offset:256 {c.LST}')
    e('s_lshl_b32 s13, s4, 3')
    e('s_add_u32 s13, s13, s6')
    e('s_lshl_b32 s13, s13, 14')
    if QRAW: e(f's_add_u32 s13, s13, {QRAW}')
    e('v_lshlrev_b32 v14, 9, v2')
    e('v_lshl_add_u32 v14, v3, 4, v14')
    e('v_add_u32 v14, s13, v14')
    e('v_lshlrev_b32 v15, 7, v2')
    e('v_bfe_u32 v10, v1, 2, 1')
    e('v_lshl_add_u32 v15, v10, 6, v15')
    e('v_bfe_u32 v10, v1, 3, 1')
    e('v_lshl_add_u32 v15, v10, 3, v15')
    e('v_and_b32 v10, 3, v1')
    e('v_lshl_add_u32 v15, v10, 1, v15')
    groups = []
    for n in range(8):
        lds = []; qs = []
        for ab in range(2):
            r = 64 + 8 * n + 4 * ab
            lds.append(f'buffer_load_dwordx4 v[{r}:{r+3}], v14, {SWS}, {sT(n//2)} offen offset:{(n%2)*2048 + ab*256} sc1')
            qs.append(r)
        groups.append((lds, qs))
    def q_pub_b():
        for pr in range(2):
            ga = 40 + pr * 8; va = 'v56' if pr == 0 else 'v57'
            e(f'buffer_store_dwordx4 v[{ga}:{ga+3}], {va}, {SWS}, s12 offen sc1')
            e(f'buffer_store_dwordx4 v[{ga+4}:{ga+7}], {va}, {SWS}, s12 offen offset:256 sc1')
    masked_poll('poll0', groups, 'tag', [10, 11], c.SLP0, ('v14',), c.RA0, q_pub_b)
    stamp(3)
    for uu in range(2):
        d = 32 + 4 * uu
        def qv(n, rr): return 64 + 8 * n + (rr >> 1) * 4 + (rr & 1)
        for r in range(4): e(f'v_add_f32 v{d+r}, v{qv(uu,r)}, v{qv(2+uu,r)}')
        for r in range(4): e(f'v_add_f32 v{d+r}, v{d+r}, v{qv(4+uu,r)}')
        for r in range(4): e(f'v_add_f32 v{d+r}, v{d+r}, v{qv(6+uu,r)}')
        e(f'v_cvt_pk_bf16_f32 v{60+2*uu}, v{d}, v{d+1}')
        e(f'v_cvt_pk_bf16_f32 v{61+2*uu}, v{d+2}, v{d+3}')
        o = L_QS + uu * 512
        e(f'ds_write_b16 v15, v{60+2*uu} offset:{o}')
        e(f'ds_write_b16_d16_hi v15, v{60+2*uu} offset:{o+16}')
        e(f'ds_write_b16 v15, v{61+2*uu} offset:{o+32}')
        e(f'ds_write_b16_d16_hi v15, v{61+2*uu} offset:{o+48}')
    for idx in range(c.NI0, c.X):
        if idx - c.NI0 >= c.N0: a.vm_pace(c.N0)
        issue(idx)
    stamp(4)
    e('s_waitcnt lgkmcnt(0)')
    e('s_barrier')
    e('s_branch L_main')
    a.vq = saved_vq
    a.label('L_others', pad=False)
    for idx in range(c.NI, c.X):
        a.vm_pace(c.N)
        issue(idx)
        if idx == c.WOI:
            exec_if_wave('ge', 4)
            for t in range(4):
                e(f'buffer_load_dwordx4 v[{32+4*t}:{35+4*t}], v12, {SWO}, {sT(2*t)} offen {c.WNT}')
            mk_wo = a.vm_mark()
            e('s_mov_b64 exec, -1')
    stamp(4)
    a.vm_wait(mk_wo)
    exec_if_wave('ge', 4)
    for t in range(4): e(f'ds_write_b128 v13, v[{32+4*t}:{35+4*t}] offset:{1024*t}')
    e('s_mov_b64 exec, -1')
    e('s_waitcnt lgkmcnt(0)')
    e('s_barrier')
    a.label('L_main', pad=False)
    stamp(2)
    scale = 128 ** -0.5; log2e = math.log2(math.e)
    cexp = log2e if c.MIMIC else scale * log2e
    def c_qfrag():
        e('v_lshrrev_b32 v14, 2, v3')
        e('v_lshlrev_b32 v14, 8, v14')
        e('v_lshl_add_u32 v14, v2, 4, v14')
        e('v_and_b32 v15, 1, v1')
        e('v_lshl_add_u32 v14, v15, 6, v14')
        for hf in range(2):
            e(f'ds_read_b128 v[{16+4*hf}:{19+4*hf}], v14 offset:{L_QS + hf*128}')
        e(f's_mov_b32 s24, {f32(scale):#x}')
        e('s_mov_b32 s25, 0xffff0000')
        e(f's_mov_b32 s26, {f32(cexp):#x}')
        e('s_waitcnt lgkmcnt(0)')
    def qk(t):
        swait(4 * t + 3)
        s = 32 + 4 * t
        y = 24 + 4 * (t % 2)
        for sub in range(2):
            d = s if sub == 0 else y
            for hf in range(2):
                r = kreg(t, sub * 2 + hf)
                cc = '0' if hf == 0 else f'v[{d}:{d+3}]'
                e(f'v_mfma_f32_16x16x32_bf16 v[{d}:{d+3}], v[{r}:{r+3}], v[{16+4*hf}:{19+4*hf}], {cc}')
    def qkfix(t):
        s = 32 + 4 * t
        y = 24 + 4 * (t % 2)
        for r in range(4): e(f'v_permlane32_swap_b32 v{s+r}, v{y+r}')
        for r in range(4): e(f'v_mov_b32_dpp v{s+r}, v{s+r} quad_perm:[0,0,2,2] row_mask:0xf bank_mask:0xf')
        for r in range(4): e(f'v_add_f32_dpp v{s+r}, v{y+r}, v{s+r} quad_perm:[1,1,3,3] row_mask:0xf bank_mask:0xf')
        if c.MIMIC:
            for step in range(8):
                for p in range(2):
                    x0 = s + 2 * p; x1 = x0 + 1; tt = 10 + p
                    e([f'v_cvt_pk_bf16_f32 v{tt}, v{x0}, v{x1}',
                       f'v_lshlrev_b32 v{x0}, 16, v{tt}',
                       f'v_and_b32 v{x1}, s25, v{tt}',
                       f'v_mul_f32 v{x0}, s24, v{x0}',
                       f'v_mul_f32 v{x1}, s24, v{x1}',
                       f'v_cvt_pk_bf16_f32 v{tt}, v{x0}, v{x1}',
                       f'v_lshlrev_b32 v{x0}, 16, v{tt}',
                       f'v_and_b32 v{x1}, s25, v{tt}'][step])
        if t == 0:
            e(f'v_max3_f32 v8, v{s}, v{s+1}, v{s+2}')
            e(f'v_max_f32 v8, v8, v{s+3}')
        else:
            e(f'v_max3_f32 v8, v8, v{s}, v{s+1}')
            e(f'v_max3_f32 v8, v8, v{s+2}, v{s+3}')
    def c_max():
        e('v_mov_b32 v9, v8')
        e('v_permlane32_swap_b32 v8, v9')
        e('v_max_f32 v8, v8, v9')
        e('v_mov_b32 v9, v8')
        e('v_permlane16_swap_b32 v8, v9')
        e('v_max_f32 v8, v8, v9')
        e('v_mul_f32 v8, s26, v8')
        e('v_sub_f32 v10, 0, v8')
        e('v_mov_b32 v9, 0')
        e('v_mov_b32 v11, 0')
    def c_exp(t):
        for r in range(4): e(f'v_fma_f32 v{32+4*t+r}, v{32+4*t+r}, s26, v10')
        for r in range(4): e(f'v_exp_f32 v{32+4*t+r}, v{32+4*t+r}')
        for r in range(4):
            idx = 4 * t + r
            s = 32 + idx; pb = 192 + 2 * idx
            la = 9 if idx % 2 == 0 else 11
            e(f'v_add_f32 v{la}, v{la}, v{s}')
            e(f'v_cvt_pk_bf16_f32 v{s}, v{s}, v{s}')
            e(f'v_and_b32 v{pb}, v6, v{s}')
            e(f'v_and_b32 v{pb+1}, v7, v{s}')
    def c_lred():
        e('v_add_f32 v9, v9, v11')
        e('v_mov_b32 v11, v9')
        e('v_permlane32_swap_b32 v9, v11')
        e('v_add_f32 v9, v9, v11')
        e('v_mov_b32 v11, v9')
        e('v_permlane16_swap_b32 v9, v11')
        e('v_add_f32 v9, v9, v11')
        stamp(5)
        e('s_lshl_b32 s13, s3, 11')
        e('v_lshlrev_b32 v29, 4, v1')
        e('v_add_u32 v16, s13, v29')
        e('s_lshl_b32 s13, s3, 3')
        e('v_add_u32 v17, s13, v29')
        e('s_mov_b32 exec_lo, 0x1111')
        e('s_mov_b32 exec_hi, 0')
        e(f'ds_write_b64 v17, v[8:9] offset:{L_ML}')
        e('s_mov_b64 exec, -1')
    def c_prep():
        addr_ml('v21')
        e('v_bfe_u32 v19, v1, 2, 2')
        e('v_lshlrev_b32 v19, 6, v19')
        e('s_cmp_lt_u32 s3, 4')
        e('s_cbranch_scc1 L_prep03')
        e('v_mul_u32_u24 v10, 4128, v2')
        e('v_lshl_add_u32 v10, v3, 1, v10')
        e('s_and_b32 s14, s3, 3')
        e('s_lshl_b32 s13, s14, 5')
        e('v_add_u32 v10, s13, v10')
        for kk in range(4):
            for half in range(2):
                for r in range(4):
                    e(f'ds_read_u16 v{32 + (kk*2+half)*4 + r}, v10 offset:{L_WO + (8*r + 4*half + kk)*128}')
        e('s_lshl_b32 s13, s14, 12')
        e('v_add_u32 v11, s13, v29')
        e('s_and_b32 s11, s3, 1')
        e('v_and_b32 v18, 1, v1')
        e('v_lshlrev_b32 v18, 10, v18')
        e('v_bfe_u32 v10, v1, 1, 2')
        e('v_lshl_add_u32 v18, v10, 8, v18')
        e('v_bfe_u32 v10, v1, 3, 2')
        e('v_lshl_add_u32 v18, v10, 4, v18')
        e('v_lshrrev_b32 v10, 5, v1')
        e('s_lshl_b32 s13, s11, 1')
        e('v_add_u32 v10, s13, v10')
        e('v_lshl_add_u32 v18, v10, 6, v18')
        addr_p1('v20', 'v10', 's11')
        addr_inbox('v27')
        e('s_lshl_b32 s13, s2, 5')
        e('v_lshlrev_b32 v28, 3, v1')
        e('v_add_u32 v28, s13, v28')
        e('s_waitcnt lgkmcnt(0)')
        for n in range(16): e(f'v_lshl_or_b32 v{32+n}, v{33+2*n}, 16, v{32+2*n}')
        for q4 in range(4): e(f'ds_write_b128 v11, v[{32+4*q4}:{35+4*q4}] offset:{L_WOF + 1024*q4}')
        e('s_branch L_pv')
        a.label('L_prep03', pad=False)
        e('v_and_b32 v10, 7, v1')
        e('v_lshlrev_b32 v22, 7, v10')
        e('v_lshl_add_u32 v22, v2, 5, v22')
        e('v_bfe_u32 v11, v1, 3, 1')
        e('v_lshl_add_u32 v22, v11, 4, v22')
        e('s_lshl_b32 s13, s10, 14')
        e('s_lshl_b32 s14, s3, 10')
        e('s_add_u32 s13, s13, s14')
        e(f's_add_u32 s13, s13, {PART1}')
        e('v_add_u32 v22, s13, v22')
        e('s_lshl_b32 s13, s10, 10')
        e('s_lshl_b32 s14, s3, 8')
        e('s_add_u32 s13, s13, s14')
        e(f's_add_u32 s13, s13, {MLG}')
        e('v_lshlrev_b32 v23, 5, v10')
        e('v_add_u32 v23, s13, v23')
        e('v_lshlrev_b32 v25, 3, v1')
        e('s_lshl_b32 s13, s3, 9')
        e('v_add_u32 v24, s13, v25')
        e('v_lshlrev_b32 v26, 17, v10')
        e('v_lshl_add_u32 v26, v2, 4, v26')
        e('s_lshl_b32 s13, s9, 2')
        e('s_add_u32 s13, s13, s3')
        e('s_lshl_b32 s13, s13, 12')
        e('s_lshl_b32 s14, s10, 6')
        e('s_add_u32 s13, s13, s14')
        e(f's_add_u32 s13, s13, {INBOX2}')
        e('v_add_u32 v26, s13, v26')
        e('s_lshl_b32 s13, s3, 12')
        e('v_add_u32 v30, s13, v29')
        a.label('L_pv', pad=False)
    def c_mlx():
        e('s_waitcnt lgkmcnt(0)')
        e('s_barrier')
        for j in range(4): e(f'ds_read_b128 v[{32+4*j}:{35+4*j}], v19 offset:{L_ML + 16*j}')
        e('s_waitcnt lgkmcnt(0)')
        e('v_max3_f32 v58, v32, v34, v36')
        e('v_max3_f32 v59, v38, v40, v42')
        e('v_max3_f32 v58, v58, v44, v46')
        e('v_max_f32 v58, v58, v59')
        e('v_sub_f32 v57, v8, v58')
        for w in range(8): e(f'v_sub_f32 v{32+2*w}, v{32+2*w}, v58')
        e('v_exp_f32 v57, v57')
        for w in range(8): e(f'v_exp_f32 v{32+2*w}, v{32+2*w}')
        e('v_mul_f32 v59, v32, v33')
        for w in range(1, 8): e(f'v_fmac_f32 v59, v{32+2*w}, v{33+2*w}')
        e('v_min_u32 v58, -2, v58')
        e('v_min_u32 v59, -2, v59')
        exec_if_wave('eq', 0, '0xffff', '0')
        if not c.NOA: e(f'buffer_store_dwordx2 v[58:59], v21, {SWS}, 0 offen {c.LST}')
        e('s_mov_b64 exec, -1')
    def wreg(kk, half): return 32 + (kk * 2 + half) * 2
    def pv(i):
        t, rr = i // 4, i % 4
        swait(32 + i)
        vr = vreg(t, rr); pb = 192 + 2 * i
        for half in range(2):
            d = 48 + 4 * half
            cc = '0' if i == 0 else f'v[{d}:{d+3}]'
            e(f'v_mfma_f32_16x16x16_bf16 v[{d}:{d+3}], v[{vr+2*half}:{vr+2*half+1}], v[{pb}:{pb+1}], {cc}')
    N2 = c.N2
    chunks = [(c.X, 1, c_qfrag)]
    for t in range(8):
        chunks.append((4 * t + 3 + N2, 1, (lambda t=t: qk(t))))
        if t: chunks.append((0, 2, (lambda t=t: qkfix(t - 1))))
    chunks.append((0, 3, lambda: qkfix(7)))
    chunks.append((0, 1, c_max))
    for t in range(8): chunks.append((0, 2, (lambda t=t: c_exp(t))))
    chunks.append((0, 1, c_lred))
    chunks.append((0, 4, c_prep))
    BUD = c.BUD
    ci = 0; pvi = 0
    mlx_done = False
    for idx in range(c.X, 64):
        if idx >= 48:
            need_t = (idx - 48) // 4
            while ci < len(chunks) and ci <= 2 * need_t + 1:
                chunks[ci][2](); ci += 1
        a.vm_pace(N2 if idx < c.X3 else c.N3)
        issue(idx)
        if c.STAMPS == 2 and idx in (24, 32, 40, 48, 56, 63): stamp({24: 3, 32: 7, 40: 8, 48: 9, 56: 10, 63: 1}[idx])
        bud = BUD
        while ci < len(chunks) and chunks[ci][0] <= idx and bud > 0:
            bud -= chunks[ci][1]; chunks[ci][2](); ci += 1
        if ci == len(chunks) and idx >= c.XB and not mlx_done:
            c_mlx(); mlx_done = True
        if ci == len(chunks):
            n = 0
            while pvi < 32 and 32 + pvi <= idx - (N2 if idx < c.X3 else c.N3) and n < c.PVR:
                pv(pvi); pvi += 1; n += 1
    while ci < len(chunks):
        chunks[ci][2](); ci += 1
    if not mlx_done: c_mlx()
    while pvi < 32:
        pv(pvi); pvi += 1
    stamp(6)
    for r in range(8): e(f'v_mul_f32 v{48+r}, v{48+r}, v57')
    e(f'ds_write_b128 v16, v[48:51] offset:{L_ACC}')
    e(f'ds_write_b128 v16, v[52:55] offset:{L_ACC+1024}')
    e('s_waitcnt lgkmcnt(0)')
    e('s_barrier')
    e('s_cmp_lt_u32 s3, 4')
    e('s_cbranch_scc1 L_stageC')
    if c.PRIO: e(f's_setprio {c.PRIO}')
    for w in range(8): e(f'ds_read_b128 v[{64+4*w}:{67+4*w}], v18 offset:{L_ACC + w*2048}')
    for w in range(1, 8):
        e(f's_waitcnt lgkmcnt({7-w})')
        for r in range(4): e(f'v_add_f32 v{64+r}, v{64+r}, v{64+4*w+r}')
    for r in range(4): e(f'v_min_u32 v{64+r}, -2, v{64+r}')
    e('s_cmp_ge_u32 s3, 6')
    e('s_cbranch_scc1 L_stageAB')
    if not c.NOA: e(f'buffer_store_dwordx4 v[64:67], v20, {SWS}, 0 offen {c.LST}')
    stamp(7)
    e('s_cmp_lg_u32 s3, 4')
    e(f's_cbranch_scc1 {LEND}')
    e('s_barrier')
    groups = [([f'buffer_load_dwordx4 v[{72+4*j}:{75+4*j}], v27, {SWS}, 0 offen offset:{1024*j} sc1' for j in (hh, hh + 2)], [72 + 4 * hh, 80 + 4 * hh]) for hh in range(2)]
    pipe_poll('poll2', groups, 'tag', [8, 9, 10, 11], c.PD2, c.SPIN, 'L_poll2_done', c.PS2)
    a.label('L_poll2_done', pad=False)
    stamp(10)
    e('v_add_f32 v64, v72, v76')
    e('v_add_f32 v65, v73, v77')
    e('v_add_f32 v66, v80, v84')
    e('v_add_f32 v67, v81, v85')
    for r in range(4): e(f'v_add_f32_dpp v{68+r}, v{64+r}, v{64+r} row_ror:8 row_mask:0xf bank_mask:0xf')
    for r in range(4): e(f'v_add_f32_dpp v{64+r}, v{68+r}, v{68+r} row_ror:4 row_mask:0xf bank_mask:0xf')
    for r in range(4): e(f'v_mov_b32 v{68+r}, v{64+r}')
    for r in range(4): e(f'v_permlane16_swap_b32 v{64+r}, v{68+r}')
    for r in range(4): e(f'v_add_f32 v{64+r}, v{64+r}, v{68+r}')
    for r in range(4): e(f'v_mov_b32 v{68+r}, v{64+r}')
    for r in range(4): e(f'v_permlane32_swap_b32 v{64+r}, v{68+r}')
    for r in range(4): e(f'v_add_f32 v{64+r}, v{64+r}, v{68+r}')
    e('v_cvt_pk_bf16_f32 v60, v64, v65')
    e('v_cvt_pk_bf16_f32 v61, v66, v67')
    e('v_mov_b32 v62, s74')
    e('v_mov_b32 v63, s75')
    e(f'v_mov_b32 v8, {EPOCH}')
    e('s_mov_b32 exec_lo, 0xf')
    e('s_mov_b32 exec_hi, 0')
    e(f'buffer_store_dwordx2 v[60:61], v28, {SOUT}, 0 offen')
    e('s_cmp_eq_u32 s2, 0')
    e('s_cselect_b32 exec_lo, 1, 0')
    e(f'buffer_store_dwordx2 v[62:63], v8, {SWS}, 0 offen')
    e(f's_branch {LEND}')
    a.label('L_stageAB', pad=False)
    e(f'buffer_store_dwordx4 v[64:67], v20, {SWS}, s12 offen sc1')
    exec_if_wave('eq', 6, '0xffff', '0')
    e(f'buffer_store_dwordx2 v[58:59], v21, {SWS}, s12 offen sc1')
    e(f's_branch {LEND}')
    a.label('L_stageC', pad=False)
    gml = [([f'buffer_load_dwordx4 v[80:83], v23, {SWS}, 0 offen sc1', f'buffer_load_dwordx4 v[84:87], v23, {SWS}, 0 offen offset:16 sc1'], [80, 84])]
    gdat = [([f'buffer_load_dwordx4 v[{64+4*s}:{67+4*s}], v22, {SWS}, {sT(s)} offen sc1'], [64 + 4 * s]) for s in range(4)]
    for q4 in range(4): e(f'ds_read_b128 v[{32+4*q4}:{35+4*q4}], v30 offset:{L_WOF + 1024*q4}')
    e('v_mov_b32 v98, s74')
    e('v_mov_b32 v99, s75')
    e('v_mov_b32 v102, s74')
    e('v_mov_b32 v103, s75')
    masked_poll('pollm', gml, 'sent', [12, 13], c.SLP1, ('v23',), c.RA1)
    e('v_max3_f32 v8, v80, v82, v84')
    e('v_max_f32 v8, v8, v86')
    for s in range(4): e(f'v_sub_f32 v{88+s}, v{80+2*s}, v8')
    for s in range(4): e(f'v_exp_f32 v{88+s}, v{88+s}')
    e('v_mul_f32 v9, v88, v81')
    for s in range(1, 4): e(f'v_fmac_f32 v9, v{88+s}, v{81+2*s}')
    e('v_rcp_f32 v9, v9')
    for s in range(4): e(f'v_mul_f32 v{88+s}, v{88+s}, v9')
    pipe_poll('poll1p', gdat, 'sent', [10, 11, 12, 13], c.PD1, max(1, c.RA1 * c.PD1), 'L_poll1_done', c.PS1)
    masked_poll('poll1', gdat, 'sent', [12, 13, 10, 11], c.SLP1, ('v22',), 0)
    stamp(8)
    for r in range(4): e(f'v_mul_f32 v{56+r}, v88, v{64+r}')
    for s in range(1, 4):
        for r in range(4): e(f'v_fmac_f32 v{56+r}, v{88+s}, v{64+4*s+r}')
    e('v_cvt_pk_bf16_f32 v60, v56, v57')
    e('v_cvt_pk_bf16_f32 v61, v58, v59')
    e(f'ds_write_b64 v24, v[60:61] offset:{L_BX}')
    e('s_waitcnt lgkmcnt(0)')
    e('s_barrier')
    for kk in range(4): e(f'ds_read_b64 v[{104+2*kk}:{105+2*kk}], v25 offset:{L_BX + kk*512}')
    for kk in range(4):
        e(f's_waitcnt lgkmcnt({3-kk})')
        for half in range(2):
            d = 48 + 4 * half; w = wreg(kk, half)
            cc = '0' if kk == 0 else f'v[{d}:{d+3}]'
            e(f'v_mfma_f32_16x16x16_bf16 v[{d}:{d+3}], v[{w}:{w+1}], v[{104+2*kk}:{105+2*kk}], {cc}')
    for r in range(4):
        e(f'v_add_f32_dpp v{96+(r>>1)*4+(r&1)}, v{52+r}, v{48+r} row_shl:8 row_mask:0xf bank_mask:0xf bound_ctrl:0')
    e('s_mov_b32 exec_lo, 0x00ff00ff')
    e('s_mov_b32 exec_hi, 0x00ff00ff')
    e(f'buffer_store_dwordx4 v[96:99], v26, {SWS}, 0 offen sc1')
    e(f'buffer_store_dwordx4 v[100:103], v26, {SWS}, 0 offen offset:2048 sc1')
    stamp(9)
    if c.STAMPS:
        a.label('L_dump', pad=True)
        stamp(11)
        if c.STAMPS == 3:
            e('s_getreg_b32 s86, hwreg(HW_REG_XCC_ID)')
            e('s_getreg_b32 s87, hwreg(HW_REG_HW_ID)')
        e('s_mov_b32 exec_lo, 1')
        e('s_mov_b32 exec_hi, 0')
        e('s_waitcnt lgkmcnt(0)')
        e('s_lshl_b32 s13, s2, 10')
        e('s_lshl_b32 s14, s3, 7')
        e('s_add_u32 s13, s13, s14')
        e(f's_add_u32 s13, s13, {STAMP}')
        e('v_mov_b32 v8, s13')
        for k2 in range(6):
            for j in range(4): e(f'v_mov_b32 v{64+j}, s{76+4*k2+j}')
            e(f'buffer_store_dwordx4 v[64:67], v8, {SWS}, 0 offen offset:{16*k2}')
            e('s_nop 1')
    a.label('L_end', pad=False)
    e('s_endpgm')
    return a

HEADER = """; GQA decode (B=8,Hq=32,Hkv=8,Sk=4096,Dh=128,D=512), single launch, generated by gen.py
; @launch grid=(256,1,1) block=(512,1,1) lds=%d
.amdgcn_target "amdgcn-amd-amdhsa--gfx950"
.text
"""
def footer(nm, sg):
    return f""".section .rodata,"a"
.p2align 6
.amdhsa_kernel {nm}
  .amdhsa_next_free_vgpr 256
  .amdhsa_next_free_sgpr {sg}
  .amdhsa_accum_offset 256
  .amdhsa_group_segment_fixed_size 0
  .amdhsa_kernarg_size 64
  .amdhsa_user_sgpr_count 2
  .amdhsa_user_sgpr_kernarg_segment_ptr 1
  .amdhsa_system_sgpr_workgroup_id_x 1
.end_amdhsa_kernel
"""
if __name__ == '__main__':
    c = Cfg()
    out = sys.argv[1]
    for kv in sys.argv[2:]:
        k, v = kv.split('=')
        setattr(c, k, int(v) if v.lstrip('-').isdigit() else v)
    for k in ('NT','WNT','LST'):
        v = getattr(c, k)
        setattr(c, k, '' if v == 'none' else v.replace('+', ' '))
    a = gen(c)
    open(out, 'w').write(HEADER % LDS_BYTES + a.text() + footer(c.NAME, 102))
    print('instr lines', len(a.lines), 'nops', a.nops, 'lds', LDS_BYTES)
```

```python
import sys, struct, math, os
from asmlib import Asm
def f32(x): return struct.unpack('<I', struct.pack('<f', x))[0]

class Cfg:
    NI = 3
    NI0 = 16
    X = 20
    WOI = 8
    BUD = 3
    XB = 54
    ROT = 7
    RECLR = 1
    RAM = 2
    QIND = 0
    H2ST = 'sc1'
    H2LD = 'sc1'
    MAPX = 0
    ILV = 1
    PS1 = 1
    PS2 = 0
    PRIO = 3
    DLY = 0
    PD1 = 1
    PD2 = 1
    N3 = 4
    X3 = 48
    PVR = 3
    N = 3
    N0 = 8
    N2 = 4
    MIMIC = 1
    STAMPS = 0
    NT = 'nt'
    WNT = 'nt'
    NAME = 'standalone__gqa_block_cached__decode_kernel'
    SPIN = 200000
    SLP0 = 2
    RA0 = 16
    RA1 = 16
    NOA = 0
    DBGT = 0
    LST = 'none'
    SLP1 = 2
    SLP2 = 2

QRAW = 0
PART1 = 1 << 20
MLG = (1 << 20) + (1 << 19)
INBOX2 = 2 << 20
EPOCH = (3 << 20) + 4096
STAMP = 128 << 20
BOFF = 4 << 20
L_QP = 0
L_ACC = 0
L_WO = 32768
L_QS = 49408
L_ML = 50432
L_BX = 50688
L_WOF = 52736
LDS_BYTES = 52736 + 16384

SX, SK, SV, SWQ, SWO, SOUT, SDBG, SWS = ['s[%d:%d]' % (b, b + 3) for b in (32, 36, 40, 44, 48, 52, 56, 60)]
def sT(t): return '0' if t == 0 else 's%d' % (64 + t)

def gen(c):
    a = Asm(); e = a.e
    nm = c.NAME
    LEND = 'L_dump' if c.STAMPS else 'L_end'
    def stamp(k):
        if c.STAMPS and (c.STAMPS != 4 or k in (0, 6, 11)): e(f's_memrealtime s[{76+2*k}:{77+2*k}]')
    def exec_if_wave(cmp, val, lo='-1', hi='-1'):
        e(f's_cmp_{cmp}_u32 s3, {val}')
        e(f's_cselect_b32 exec_lo, {lo}, 0')
        e(f's_cselect_b32 exec_hi, {hi}, 0')
    MASKS = [0, 24, 26, 28, 30, 56, 58, 14]
    def masked_poll(name, groups, kind, tmp, slp, tog=(), ra=0, hook=None):
        for gi in range(len(groups)): e(f's_mov_b64 s[{MASKS[gi]}:{MASKS[gi]+1}], -1')
        e(f's_mov_b32 s73, {c.SPIN}')
        a.label(f'L_{name}', pad=False)
        for gi, (loads, quads) in enumerate(groups):
            m = MASKS[gi]
            e(f's_mov_b64 exec, s[{m}:{m+1}]')
            e(f's_cbranch_execz L_{name}_s{gi}')
            for l in loads: e(l)
            a.label(f'L_{name}_s{gi}', pad=False)
        e('s_waitcnt vmcnt(0)')
        for gi, (loads, quads) in enumerate(groups):
            m = MASKS[gi]
            t = tmp[gi % len(tmp)]
            e(f's_mov_b64 exec, s[{m}:{m+1}]')
            if kind == 'tag':
                for q in quads:
                    e(f'v_xor_b32 v{q+2}, s74, v{q+2}')
                    e(f'v_xor_b32 v{q+3}, s75, v{q+3}')
                if len(quads) == 1:
                    e(f'v_or_b32 v{t}, v{quads[0]+2}, v{quads[0]+3}')
                else:
                    e(f'v_or3_b32 v{t}, v{quads[0]+2}, v{quads[0]+3}, v{quads[1]+2}')
                    e(f'v_or_b32 v{t}, v{t}, v{quads[1]+3}')
                e(f'v_cmp_ne_u32 s[{m}:{m+1}], 0, v{t}')
            else:
                regs = [q + r for q in quads for r in range(4)]
                e(f'v_max3_u32 v{t}, v{regs[0]}, v{regs[1]}, v{regs[2]}')
                k = 3
                while k < len(regs):
                    if k + 1 < len(regs):
                        e(f'v_max3_u32 v{t}, v{t}, v{regs[k]}, v{regs[k+1]}'); k += 2
                    else:
                        e(f'v_max_u32 v{t}, v{t}, v{regs[k]}'); k += 1
                e(f'v_cmp_eq_u32 s[{m}:{m+1}], -1, v{t}')
        e('s_mov_b64 exec, -1')
        m1 = MASKS[1] if len(groups) > 1 else MASKS[0]
        e(f's_or_b64 vcc, s[{MASKS[0]}:{MASKS[0]+1}], s[{m1}:{m1+1}]')
        for gi in range(2, len(groups)): e(f's_or_b64 vcc, vcc, s[{MASKS[gi]}:{MASKS[gi]+1}]')
        e(f's_cbranch_scc0 L_{name}_done')
        e(f's_sleep {slp}')
        if hook:
            e(f's_cmp_lg_u32 s73, {c.SPIN - ra}')
            e(f's_cbranch_scc1 L_{name}_nohook')
            hook()
            a.label(f'L_{name}_nohook', pad=False)
        if tog:
            e(f's_cmp_le_u32 s73, {c.SPIN - ra}')
            e(f's_cselect_b32 s13, {BOFF}, 0')
            for v in tog: e(f'v_xor_b32 {v}, s13, {v}')
        e('s_sub_u32 s73, s73, 1')
        e('s_cmp_lg_u32 s73, 0')
        e(f's_cbranch_scc1 L_{name}')
        a.label(f'L_{name}_done', pad=False)
        if hook:
            e(f's_cmp_lt_u32 s73, {c.SPIN - ra}')
            e(f's_cbranch_scc1 L_{name}_nohook2')
            hook()
            a.label(f'L_{name}_nohook2', pad=False)
    def poll_check(groups, kind, tmp):
        for gi, (loads, quads) in enumerate(groups):
            m = MASKS[gi]
            t = tmp[(2 * gi) % len(tmp)]; t2 = tmp[(2 * gi + 1) % len(tmp)]
            e(f's_mov_b64 exec, s[{m}:{m+1}]')
            if kind == 'tag':
                e(f'v_xor_b32 v{t}, s74, v{quads[0]+2}')
                e(f'v_xor_b32 v{t2}, s75, v{quads[0]+3}')
                for q in quads[1:]:
                    e(f'v_or_b32 v{t}, v{t}, v{t2}')
                    e(f'v_xor_b32 v{t2}, s74, v{q+2}')
                    e(f'v_or_b32 v{t}, v{t}, v{t2}')
                    e(f'v_xor_b32 v{t2}, s75, v{q+3}')
                e(f'v_or_b32 v{t}, v{t}, v{t2}')
                e(f'v_cmp_ne_u32 s[{m}:{m+1}], 0, v{t}')
            else:
                regs = [q + r for q in quads for r in range(4)]
                e(f'v_max3_u32 v{t}, v{regs[0]}, v{regs[1]}, v{regs[2]}')
                k = 3
                while k < len(regs):
                    if k + 1 < len(regs):
                        e(f'v_max3_u32 v{t}, v{t}, v{regs[k]}, v{regs[k+1]}'); k += 2
                    else:
                        e(f'v_max_u32 v{t}, v{t}, v{regs[k]}'); k += 1
                e(f'v_cmp_eq_u32 s[{m}:{m+1}], -1, v{t}')
        e('s_mov_b64 exec, -1')
        if len(groups) == 1:
            e(f's_or_b64 vcc, s[{MASKS[0]}:{MASKS[0]+1}], s[{MASKS[0]}:{MASKS[0]+1}]')
        else:
            e(f's_or_b64 vcc, s[{MASKS[0]}:{MASKS[0]+1}], s[{MASKS[1]}:{MASKS[1]+1}]')
        for gi in range(2, len(groups)): e(f's_or_b64 vcc, vcc, s[{MASKS[gi]}:{MASKS[gi]+1}]')
    def pipe_poll(name, groups, kind, tmp, depth, rounds, done_label, slp=0, pre=False):
        R = sum(len(l) for l, q in groups)
        for d in range(depth - (1 if pre else 0)):
            for l, q in groups:
                for x in l: e(x)
        for gi in range(len(groups)): e(f's_mov_b64 s[{MASKS[gi]}:{MASKS[gi]+1}], -1')
        e(f's_mov_b32 s73, {rounds}')
        a.label(f'L_{name}', pad=False)
        e(f's_waitcnt vmcnt({R*(depth-1)})')
        poll_check(groups, kind, tmp)
        e(f's_cbranch_scc0 {done_label}')
        if slp: e(f's_sleep {slp}')
        for gi, (loads, quads) in enumerate(groups):
            m = MASKS[gi]
            e(f's_mov_b64 exec, s[{m}:{m+1}]')
            for l in loads: e(l)
        e('s_mov_b64 exec, -1')
        e('s_sub_u32 s73, s73, 1')
        e('s_cmp_lg_u32 s73, 0')
        e(f's_cbranch_scc1 L_{name}')
        e('s_waitcnt vmcnt(0)')
    a.raw(f'.globl {nm}\n.p2align 8\n.type {nm},@function\n{nm}:')
    e('s_cmp_ge_u32 s2, 256')
    e('s_cbranch_scc1 L_end')
    e('s_load_dwordx16 s[16:31], s[0:1], 0')
    if c.DBGT: e('s_memrealtime s[98:99]')
    if c.STAMPS:
        for k in range(76, 100): e(f's_mov_b32 s{k}, 0')
    stamp(0)
    e('v_lshrrev_b32 v1, 6, v0')
    e('v_readfirstlane_b32 s3, v1')
    e('v_and_b32 v1, 63, v0')
    e('v_lshrrev_b32 v2, 4, v1')
    e('v_and_b32 v3, 15, v1')
    e('s_and_b32 s4, s2, 7')
    e('s_lshr_b32 s5, s2, 3')
    if c.MAPX:
        e('s_xor_b32 s4, s4, s5')
        e('s_and_b32 s4, s4, 7')
    e('s_lshr_b32 s6, s5, 2')
    e('s_and_b32 s7, s5, 3')
    e('s_lshr_b32 s8, s5, 3')
    e('s_and_b32 s9, s5, 7')
    e('s_lshl_b32 s10, s4, 2')
    e('s_add_u32 s10, s10, s8')
    for t in range(1, 9): e(f's_mov_b32 s{64+t}, {t*4096}')
    e('s_lshl_b32 s11, s8, 7')
    e('s_lshl_b32 s12, s3, 4')
    e('s_add_u32 s11, s11, s12')
    e('s_lshl_b32 s12, s11, 13')
    e('s_lshl_b32 s13, s4, 10')
    e('s_add_u32 s12, s12, s13')
    e('s_lshl_b32 s13, s9, 7')
    e('s_add_u32 s12, s12, s13')
    e('v_lshrrev_b32 v8, 3, v3')
    e('v_lshl_add_u32 v8, v2, 2, v8')
    e('v_lshlrev_b32 v8, 13, v8')
    e('v_and_b32 v9, 7, v3')
    e('v_lshl_add_u32 v8, v9, 4, v8')
    e('v_add_u32 v8, s12, v8')
    e('v_lshrrev_b32 v9, 2, v3')
    e('v_lshlrev_b32 v9, 10, v9')
    e('v_lshl_add_u32 v9, v2, 3, v9')
    e('s_lshl_b32 s13, s11, 1')
    e('v_add_u32 v9, s13, v9')
    e('s_lshl_b32 s13, s6, 5')
    e('s_lshl_b32 s14, s4, 2')
    e('s_add_u32 s13, s13, s14')
    if not c.ILV: e('s_add_u32 s13, s13, s7')
    e('s_lshl_b32 s13, s13, 18')
    if c.ILV:
        e(f's_lshl_b32 s14, s7, {15 if c.ILV == 1 else 12}')
        e('s_add_u32 s13, s13, s14')
    e(f's_lshl_b32 s14, s3, {14 if c.ILV == 2 else 12}')
    e('s_add_u32 s13, s13, s14')
    e('v_and_b32 v4, 3, v3')
    e('v_bfe_u32 v5, v3, 2, 1')
    e('v_lshl_add_u32 v4, v4, 2, v5')
    e('v_lshlrev_b32 v4, 8, v4')
    e('v_lshl_add_u32 v4, v2, 4, v4')
    e('v_lshrrev_b32 v5, 3, v3')
    e('v_lshl_add_u32 v4, v5, 6, v4')
    e('v_add_u32 v4, s13, v4')
    e('v_lshlrev_b32 v5, 4, v1')
    e('v_add_u32 v5, s13, v5')
    e('s_waitcnt lgkmcnt(0)')
    def srd(base, p, size):
        e(f's_mov_b32 s{base}, s{p}')
        e(f's_and_b32 s{base+1}, s{p+1}, 0xffff')
        e(f's_mov_b32 s{base+2}, {size}')
        e(f's_mov_b32 s{base+3}, 0x20000')
    srd(44, 22, 4 << 20); srd(32, 16, 8192)
    if c.DBGT: srd(92, 28, 256)
    e(f'buffer_load_dwordx4 v[64:67], v8, {SWQ}, 0 offen {c.WNT}')
    e(f'buffer_load_dwordx4 v[68:71], v8, {SWQ}, {sT(4)} offen {c.WNT}')
    e(f'buffer_load_dwordx2 v[72:73], v9, {SX}, 0 offen')
    e(f'buffer_load_dwordx2 v[74:75], v9, {SX}, {sT(1)} offen')
    mk_wq = a.vm_mark()
    srd(36, 18, 64 << 20)
    e(f's_add_u32 s14, s30, {EPOCH}')
    e('s_addc_u32 s15, s31, 0')
    e('s_load_dwordx2 s[74:75], s[14:15], 0')
    srd(48, 24, 4 << 20); srd(40, 20, 64 << 20); srd(52, 26, 8192); srd(60, 30, 256 << 20)
    if c.ROT == 0:
        for j in range(1, 8): e(f's_mov_b32 s{16+j}, {j*(131072 if c.ILV else 32768)}')
    else:
        if c.ROT == 1: e('s_mov_b32 s13, s5')
        elif c.ROT == 2: e('s_add_u32 s13, s5, s4')
        elif c.ROT == 3: e('s_mov_b32 s13, s4')
        elif c.ROT == 4: e('s_mov_b32 s13, s6')
        elif c.ROT == 5:
            e('s_lshl_b32 s13, s7, 1'); e('s_add_u32 s13, s13, s6'); e('s_add_u32 s13, s13, s4')
        elif c.ROT == 6:
            e('s_lshl_b32 s13, s7, 1'); e('s_add_u32 s13, s13, s6')
        elif c.ROT == 7:
            e('s_mul_i32 s13, s6, 3')
        elif c.ROT == 8:
            e('s_lshl_b32 s13, s7, 1')
        elif c.ROT == 9:
            e('s_add_u32 s13, s7, s6')
        elif c.ROT == 10:
            e('s_xor_b32 s13, s6, s4')
        elif c.ROT == 11:
            e('s_lshl_b32 s13, s4, 2'); e('s_add_u32 s13, s13, s6')
        elif c.ROT == 12:
            e('s_sub_u32 s13, 8, s6')
        elif c.ROT == 13:
            e('s_lshr_b32 s13, s6, 1'); e('s_lshl_b32 s13, s13, 1')
        for j in range(8):
            e(f's_add_u32 s14, s13, {j}')
            e('s_and_b32 s14, s14, 7')
            e(f's_lshl_b32 s{16+j}, s14, {17 if c.ILV else 15}')
    def sJ(j): return '0' if (j == 0 and c.ROT == 0) else 's%d' % (16 + j)
    marks = {}
    issued = [0]
    def swait(idx):
        n = issued[0] - (idx + 1)
        assert n >= 0
        e(f's_waitcnt vmcnt({min(n,63)})')
    def kreg(t, kk): return 128 + 16 * t + 4 * kk
    def vreg(t, rr): return (64 + 16 * t + 4 * rr) if t < 4 else (128 + 16 * (t - 4) + 4 * rr)
    def issue(idx):
        if idx < 32:
            t, kk = idx // 4, idx % 4; r = kreg(t, kk)
            e(f'buffer_load_dwordx4 v[{r}:{r+3}], v4, {SK}, {sJ(t)} offen offset:{(kk>>1)*512 + (kk&1)*128} {c.NT}')
        else:
            t, rr = (idx - 32) // 4, idx % 4; r = vreg(t, rr)
            e(f'buffer_load_dwordx4 v[{r}:{r+3}], v5, {SV}, {sJ(t)} offen offset:{rr*1024} {c.NT}')
        marks[idx] = a.vm_mark()
        issued[0] = idx + 1
    for idx in range(c.NI): issue(idx)
    e('v_and_b32 v14, 1, v1')
    e('v_lshlrev_b32 v14, 4, v14')
    e('v_mov_b32 v15, 0xffff')
    e('v_lshlrev_b32 v15, v14, v15')
    e('v_and_b32 v14, 3, v1')
    e('v_cmp_gt_u32 vcc, 2, v14')
    e('v_cndmask_b32 v6, 0, v15, vcc')
    e('v_xor_b32 v7, v15, v6')
    e('s_and_b32 s15, s3, 3')
    e('s_lshl_b32 s13, s10, 7')
    e('s_lshl_b32 s14, s15, 5')
    e('s_add_u32 s13, s13, s14')
    e('s_lshl_b32 s13, s13, 10')
    e('s_lshl_b32 s14, s9, 7')
    e('s_add_u32 s13, s13, s14')
    e('v_lshrrev_b32 v10, 3, v1')
    e('v_and_b32 v11, 7, v1')
    e('v_lshlrev_b32 v12, 10, v10')
    e('v_lshl_add_u32 v12, v11, 4, v12')
    e('v_add_u32 v12, s13, v12')
    e('s_mul_i32 s13, s15, 4128')
    e(f's_add_u32 s13, s13, {L_WO}')
    e('v_lshlrev_b32 v13, 4, v1')
    e('v_add_u32 v13, s13, v13')
    e('v_mov_b32 v14, 0x0c0c0c0c')
    e('s_mov_b32 s13, 0x01000100')
    e('s_mov_b32 s14, 0x03020302')
    e('v_bfi_b32 v84, v6, s13, v14')
    e('v_bfi_b32 v85, v7, s13, v14')
    e('v_bfi_b32 v86, v6, s14, v14')
    e('v_bfi_b32 v87, v7, s14, v14')
    e('s_mov_b32 vcc_lo, 0')
    e('s_mov_b32 vcc_hi, -1')
    e('s_lshl_b32 s13, s3, 12')
    e('v_lshlrev_b32 v14, 4, v1')
    e('v_add_u32 v14, s13, v14')
    def addr_p1(vd, vt, alpha_sgpr):
        e(f'v_lshrrev_b32 {vt}, 5, v1')
        e(f'v_lshlrev_b32 {vd}, 14, {vt}')
        e(f'v_bfe_u32 {vt}, v1, 3, 2')
        e(f'v_lshl_add_u32 {vd}, {vt}, 10, {vd}')
        e(f'v_and_b32 {vt}, 7, v1')
        e(f'v_lshl_add_u32 {vd}, {vt}, 4, {vd}')
        e('s_lshl_b32 s13, s4, 16')
        e('s_lshl_b32 s14, s7, 12')
        e('s_add_u32 s13, s13, s14')
        e('s_lshl_b32 s14, s6, 7')
        e('s_add_u32 s13, s13, s14')
        e(f's_add_u32 s13, s13, {PART1}')
        if alpha_sgpr:
            e(f's_lshl_b32 s14, {alpha_sgpr}, 15')
            e('s_add_u32 s13, s13, s14')
        e(f'v_add_u32 {vd}, s13, {vd}')
    def addr_ml(vm):
        e(f'v_lshlrev_b32 {vm}, 8, v3')
        e('s_lshl_b32 s13, s4, 12')
        e('s_lshl_b32 s14, s6, 5')
        e('s_add_u32 s13, s13, s14')
        e('s_lshl_b32 s14, s7, 3')
        e('s_add_u32 s13, s13, s14')
        e(f's_add_u32 s13, s13, {MLG}')
        e(f'v_add_u32 {vm}, s13, {vm}')
    def addr_inbox(vd):
        e('s_lshl_b32 s13, s2, 12')
        e(f's_add_u32 s13, s13, {INBOX2}')
        e(f'v_lshlrev_b32 {vd}, 4, v1')
        e(f'v_add_u32 {vd}, s13, {vd}')
    a.vm_wait(mk_wq)
    def dq(bg, aa, half): return 96 + ((bg * 2 + aa) * 2 + half) * 4
    k = 0
    for t in range(2):
        for bg in range(2):
            for aa in range(2):
                bt = 88 + 2 * (k % 4); k += 1
                xw = 72 + 2 * bg + t
                e(f'v_perm_b32 v{bt}, v{xw}, v{xw}, v{84+2*aa}')
                e(f'v_perm_b32 v{bt+1}, v{xw}, v{xw}, v{85+2*aa}')
                for half in range(2):
                    d = dq(bg, aa, half); A0 = 64 + 4 * t + 2 * half
                    cc = '0' if t == 0 else f'v[{d}:{d+3}]'
                    e(f'v_mfma_f32_16x16x16_bf16 v[{d}:{d+3}], v[{A0}:{A0+1}], v[{bt}:{bt+1}], {cc}')
    saved_vq = list(a.vq)
    e('s_cmp_lg_u32 s3, 0')
    e('s_cbranch_scc1 L_merge')
    addr_p1('v48', 'v50', None)
    addr_ml('v49')
    for r in range(4): e(f'v_mov_b32 v{52+r}, -1')
    e(f'v_add_u32 v50, {BOFF}, v48')
    e(f'v_add_u32 v51, {BOFF}, v49')
    for va in ('v48', 'v50'):
        e(f'buffer_store_dwordx4 v[52:55], {va}, {SWS}, 0 offen sc1')
        e(f'buffer_store_dwordx4 v[52:55], {va}, {SWS}, {sT(8)} offen sc1')
    e('s_mov_b32 exec_lo, 0xffff')
    e('s_mov_b32 exec_hi, 0')
    for va in ('v49', 'v51'):
        e(f'buffer_store_dwordx2 v[52:53], {va}, {SWS}, 0 offen sc1')
    mk_clr = a.vm_mark()
    e('s_mov_b64 exec, -1')
    for idx in range(c.NI, c.NI0): issue(idx)
    a.label('L_merge', pad=True)
    for bg in range(2):
        for half in range(2):
            d0 = dq(bg, 0, half); d1 = dq(bg, 1, half)
            for r in range(4): e(f'v_cndmask_b32 v{d0+r}, v{d0+r}, v{d1+r}, vcc')
            e(f'ds_write_b128 v14, v[{d0}:{d0+3}] offset:{L_QP + (bg*2+half)*1024}')
    e('s_waitcnt lgkmcnt(0)')
    e('s_barrier')
    stamp(1)
    e('s_mov_b32 s12, %d' % BOFF)
    e('s_add_u32 s74, s74, 1')
    e('s_add_u32 s75, s75, 0x9E3779B9')
    e('s_cmp_lg_u32 s3, 0')
    e('s_cbranch_scc1 L_others')
    e('v_lshlrev_b32 v14, 4, v1')
    for pr in range(2):
        for half in range(2):
            for w in range(8):
                r = 64 + (half * 8 + w) * 4
                e(f'ds_read_b128 v[{r}:{r+3}], v14 offset:{L_QP + w*4096 + (pr*2+half)*1024}')
        if pr == 0:
            e('s_lshl_b32 s13, s4, 17')
            e('s_lshl_b32 s14, s5, 9')
            e('s_add_u32 s13, s13, s14')
            if QRAW: e(f's_add_u32 s13, s13, {QRAW}')
            e('v_bfe_u32 v10, v1, 2, 2')
            e('v_lshlrev_b32 v10, 14, v10')
            e('v_lshl_add_u32 v10, v2, 6, v10')
            e('v_and_b32 v15, 3, v1')
            e('v_lshl_add_u32 v10, v15, 4, v10')
            e('v_add_u32 v56, s13, v10')
            e('v_add_u32 v57, 0x10000, v56')
        e('s_waitcnt lgkmcnt(0)')
        for half in range(2):
            dst = 32 + half * 4
            b0 = 64 + half * 32
            for r in range(4):
                e(f'v_add_f32 v{dst+r}, v{b0+r}, v{b0+4+r}')
            for w in range(2, 8):
                for r in range(4):
                    e(f'v_add_f32 v{dst+r}, v{dst+r}, v{b0+4*w+r}')
        for r in range(4): e(f'v_permlane32_swap_b32 v{32+r}, v{36+r}')
        ga = 40 + pr * 8
        e(f'v_add_f32 v{ga}, v32, v36')
        e(f'v_add_f32 v{ga+1}, v33, v37')
        e(f'v_mov_b32 v{ga+2}, s74')
        e(f'v_mov_b32 v{ga+3}, s75')
        e(f'v_add_f32 v{ga+4}, v34, v38')
        e(f'v_add_f32 v{ga+5}, v35, v39')
        e(f'v_mov_b32 v{ga+6}, s74')
        e(f'v_mov_b32 v{ga+7}, s75')
        va = 'v56' if pr == 0 else 'v57'
        if pr == 0: a.vm_wait(mk_clr)
        if not c.NOA:
            e(f'buffer_store_dwordx4 v[{ga}:{ga+3}], {va}, {SWS}, 0 offen {c.LST}')
            e(f'buffer_store_dwordx4 v[{ga+4}:{ga+7}], {va}, {SWS}, 0 offen offset:256 {c.LST}')
    e('s_lshl_b32 s13, s4, 3')
    e('s_add_u32 s13, s13, s6')
    e('s_lshl_b32 s13, s13, 14')
    if QRAW: e(f's_add_u32 s13, s13, {QRAW}')
    e('v_lshlrev_b32 v14, 9, v2')
    e('v_lshl_add_u32 v14, v3, 4, v14')
    e('v_add_u32 v14, s13, v14')
    e('v_lshlrev_b32 v15, 7, v2')
    e('v_bfe_u32 v10, v1, 2, 1')
    e('v_lshl_add_u32 v15, v10, 6, v15')
    e('v_bfe_u32 v10, v1, 3, 1')
    e('v_lshl_add_u32 v15, v10, 3, v15')
    e('v_and_b32 v10, 3, v1')
    e('v_lshl_add_u32 v15, v10, 1, v15')
    groups = []
    for n in range(8):
        lds = []; qs = []
        for ab in range(2):
            r = 64 + 8 * n + 4 * ab
            lds.append(f'buffer_load_dwordx4 v[{r}:{r+3}], v14, {SWS}, {sT(n//2)} offen offset:{(n%2)*2048 + ab*256} sc1')
            qs.append(r)
        groups.append((lds, qs))
    if c.QIND:
        e('v_and_b32 v10, 31, v1')
        e('v_lshlrev_b32 v10, 9, v10')
        e('v_add_u32 v10, s13, v10')
        gi = [([f'buffer_load_dwordx4 v[64:67], v10, {SWS}, 0 offen offset:496 sc1'], [64])]
        pipe_poll('polli', gi, 'tag', [11, 58], 1, c.QIND, 'L_polli_done', c.SLP0)
        a.label('L_polli_done', pad=False)
    def q_pub_b():
        for pr in range(2):
            ga = 40 + pr * 8; va = 'v56' if pr == 0 else 'v57'
            e(f'buffer_store_dwordx4 v[{ga}:{ga+3}], {va}, {SWS}, s12 offen sc1')
            e(f'buffer_store_dwordx4 v[{ga+4}:{ga+7}], {va}, {SWS}, s12 offen offset:256 sc1')
    masked_poll('poll0', groups, 'tag', [10, 11], c.SLP0, ('v14',), c.RA0, q_pub_b)
    stamp(3)
    for uu in range(2):
        d = 32 + 4 * uu
        def qv(n, rr): return 64 + 8 * n + (rr >> 1) * 4 + (rr & 1)
        for r in range(4): e(f'v_add_f32 v{d+r}, v{qv(uu,r)}, v{qv(2+uu,r)}')
        for r in range(4): e(f'v_add_f32 v{d+r}, v{d+r}, v{qv(4+uu,r)}')
        for r in range(4): e(f'v_add_f32 v{d+r}, v{d+r}, v{qv(6+uu,r)}')
        e(f'v_cvt_pk_bf16_f32 v{60+2*uu}, v{d}, v{d+1}')
        e(f'v_cvt_pk_bf16_f32 v{61+2*uu}, v{d+2}, v{d+3}')
        o = L_QS + uu * 512
        e(f'ds_write_b16 v15, v{60+2*uu} offset:{o}')
        e(f'ds_write_b16_d16_hi v15, v{60+2*uu} offset:{o+16}')
        e(f'ds_write_b16 v15, v{61+2*uu} offset:{o+32}')
        e(f'ds_write_b16_d16_hi v15, v{61+2*uu} offset:{o+48}')
    for idx in range(c.NI0, c.X):
        if idx - c.NI0 >= c.N0: a.vm_pace(c.N0)
        issue(idx)
    stamp(4)
    e('s_waitcnt lgkmcnt(0)')
    e('s_barrier')
    e('s_branch L_main')
    a.vq = saved_vq
    a.label('L_others', pad=False)
    for idx in range(c.NI, c.X):
        a.vm_pace(c.N)
        issue(idx)
        if idx == c.WOI:
            exec_if_wave('ge', 4)
            for t in range(4):
                e(f'buffer_load_dwordx4 v[{32+4*t}:{35+4*t}], v12, {SWO}, {sT(2*t)} offen {c.WNT}')
            mk_wo = a.vm_mark()
            e('s_mov_b64 exec, -1')
    stamp(4)
    a.vm_wait(mk_wo)
    exec_if_wave('ge', 4)
    for t in range(4): e(f'ds_write_b128 v13, v[{32+4*t}:{35+4*t}] offset:{1024*t}')
    e('s_mov_b64 exec, -1')
    e('s_waitcnt lgkmcnt(0)')
    e('s_barrier')
    a.label('L_main', pad=False)
    stamp(2)
    scale = 128 ** -0.5; log2e = math.log2(math.e)
    cexp = log2e if c.MIMIC else scale * log2e
    def c_qfrag():
        e('v_lshrrev_b32 v14, 2, v3')
        e('v_lshlrev_b32 v14, 8, v14')
        e('v_lshl_add_u32 v14, v2, 4, v14')
        e('v_and_b32 v15, 1, v1')
        e('v_lshl_add_u32 v14, v15, 6, v14')
        for hf in range(2):
            e(f'ds_read_b128 v[{16+4*hf}:{19+4*hf}], v14 offset:{L_QS + hf*128}')
        e(f's_mov_b32 s24, {f32(scale):#x}')
        e('s_mov_b32 s25, 0xffff0000')
        e(f's_mov_b32 s26, {f32(cexp):#x}')
        e('s_waitcnt lgkmcnt(0)')
    def qk(t):
        swait(4 * t + 3)
        s = 32 + 4 * t
        y = 24 + 4 * (t % 2)
        for sub in range(2):
            d = s if sub == 0 else y
            for hf in range(2):
                r = kreg(t, sub * 2 + hf)
                cc = '0' if hf == 0 else f'v[{d}:{d+3}]'
                e(f'v_mfma_f32_16x16x32_bf16 v[{d}:{d+3}], v[{r}:{r+3}], v[{16+4*hf}:{19+4*hf}], {cc}')
    def qkfix(t):
        s = 32 + 4 * t
        y = 24 + 4 * (t % 2)
        for r in range(4): e(f'v_permlane32_swap_b32 v{s+r}, v{y+r}')
        for r in range(4): e(f'v_mov_b32_dpp v{s+r}, v{s+r} quad_perm:[0,0,2,2] row_mask:0xf bank_mask:0xf')
        for r in range(4): e(f'v_add_f32_dpp v{s+r}, v{y+r}, v{s+r} quad_perm:[1,1,3,3] row_mask:0xf bank_mask:0xf')
        if c.MIMIC:
            for step in range(8):
                for p in range(2):
                    x0 = s + 2 * p; x1 = x0 + 1; tt = 10 + p
                    e([f'v_cvt_pk_bf16_f32 v{tt}, v{x0}, v{x1}',
                       f'v_lshlrev_b32 v{x0}, 16, v{tt}',
                       f'v_and_b32 v{x1}, s25, v{tt}',
                       f'v_mul_f32 v{x0}, s24, v{x0}',
                       f'v_mul_f32 v{x1}, s24, v{x1}',
                       f'v_cvt_pk_bf16_f32 v{tt}, v{x0}, v{x1}',
                       f'v_lshlrev_b32 v{x0}, 16, v{tt}',
                       f'v_and_b32 v{x1}, s25, v{tt}'][step])
        if t == 0:
            e(f'v_max3_f32 v8, v{s}, v{s+1}, v{s+2}')
            e(f'v_max_f32 v8, v8, v{s+3}')
        else:
            e(f'v_max3_f32 v8, v8, v{s}, v{s+1}')
            e(f'v_max3_f32 v8, v8, v{s+2}, v{s+3}')
    def c_max():
        e('v_mov_b32 v9, v8')
        e('v_permlane32_swap_b32 v8, v9')
        e('v_max_f32 v8, v8, v9')
        e('v_mov_b32 v9, v8')
        e('v_permlane16_swap_b32 v8, v9')
        e('v_max_f32 v8, v8, v9')
        e('v_mul_f32 v8, s26, v8')
        e('v_sub_f32 v10, 0, v8')
        e('v_mov_b32 v9, 0')
        e('v_mov_b32 v11, 0')
    def c_exp(t):
        for r in range(4): e(f'v_fma_f32 v{32+4*t+r}, v{32+4*t+r}, s26, v10')
        for r in range(4): e(f'v_exp_f32 v{32+4*t+r}, v{32+4*t+r}')
        for r in range(4):
            idx = 4 * t + r
            s = 32 + idx; pb = 192 + 2 * idx
            la = 9 if idx % 2 == 0 else 11
            e(f'v_add_f32 v{la}, v{la}, v{s}')
            e(f'v_cvt_pk_bf16_f32 v{s}, v{s}, v{s}')
            e(f'v_and_b32 v{pb}, v6, v{s}')
            e(f'v_and_b32 v{pb+1}, v7, v{s}')
    def c_lred():
        e('v_add_f32 v9, v9, v11')
        e('v_mov_b32 v11, v9')
        e('v_permlane32_swap_b32 v9, v11')
        e('v_add_f32 v9, v9, v11')
        e('v_mov_b32 v11, v9')
        e('v_permlane16_swap_b32 v9, v11')
        e('v_add_f32 v9, v9, v11')
        stamp(5)
        e('s_lshl_b32 s13, s3, 11')
        e('v_lshlrev_b32 v29, 4, v1')
        e('v_add_u32 v16, s13, v29')
        e('s_lshl_b32 s13, s3, 3')
        e('v_add_u32 v17, s13, v29')
        e('s_mov_b32 exec_lo, 0x1111')
        e('s_mov_b32 exec_hi, 0')
        e(f'ds_write_b64 v17, v[8:9] offset:{L_ML}')
        e('s_mov_b64 exec, -1')
    def c_prep():
        addr_ml('v21')
        e('v_bfe_u32 v19, v1, 2, 2')
        e('v_lshlrev_b32 v19, 6, v19')
        e('s_cmp_lt_u32 s3, 4')
        e('s_cbranch_scc1 L_prep03')
        e('v_mul_u32_u24 v10, 4128, v2')
        e('v_lshl_add_u32 v10, v3, 1, v10')
        e('s_and_b32 s14, s3, 3')
        e('s_lshl_b32 s13, s14, 5')
        e('v_add_u32 v10, s13, v10')
        for kk in range(4):
            for half in range(2):
                for r in range(4):
                    e(f'ds_read_u16 v{32 + (kk*2+half)*4 + r}, v10 offset:{L_WO + (8*r + 4*half + kk)*128}')
        e('s_lshl_b32 s13, s14, 12')
        e('v_add_u32 v11, s13, v29')
        e('s_and_b32 s11, s3, 1')
        e('v_and_b32 v18, 1, v1')
        e('v_lshlrev_b32 v18, 10, v18')
        e('v_bfe_u32 v10, v1, 1, 2')
        e('v_lshl_add_u32 v18, v10, 8, v18')
        e('v_bfe_u32 v10, v1, 3, 2')
        e('v_lshl_add_u32 v18, v10, 4, v18')
        e('v_lshrrev_b32 v10, 5, v1')
        e('s_lshl_b32 s13, s11, 1')
        e('v_add_u32 v10, s13, v10')
        e('v_lshl_add_u32 v18, v10, 6, v18')
        addr_p1('v20', 'v10', 's11')
        addr_inbox('v27')
        e('s_lshl_b32 s13, s2, 5')
        e('v_lshlrev_b32 v28, 3, v1')
        e('v_add_u32 v28, s13, v28')
        e('s_waitcnt lgkmcnt(0)')
        for n in range(16): e(f'v_lshl_or_b32 v{32+n}, v{33+2*n}, 16, v{32+2*n}')
        for q4 in range(4): e(f'ds_write_b128 v11, v[{32+4*q4}:{35+4*q4}] offset:{L_WOF + 1024*q4}')
        e('s_branch L_pv')
        a.label('L_prep03', pad=False)
        e('v_and_b32 v10, 7, v1')
        e('v_lshlrev_b32 v22, 7, v10')
        e('v_lshl_add_u32 v22, v2, 5, v22')
        e('v_bfe_u32 v11, v1, 3, 1')
        e('v_lshl_add_u32 v22, v11, 4, v22')
        e('s_lshl_b32 s13, s10, 14')
        e('s_lshl_b32 s14, s3, 10')
        e('s_add_u32 s13, s13, s14')
        e(f's_add_u32 s13, s13, {PART1}')
        e('v_add_u32 v22, s13, v22')
        e('s_lshl_b32 s13, s10, 10')
        e('s_lshl_b32 s14, s3, 8')
        e('s_add_u32 s13, s13, s14')
        e(f's_add_u32 s13, s13, {MLG}')
        e('v_lshlrev_b32 v23, 5, v10')
        e('v_add_u32 v23, s13, v23')
        e('v_lshlrev_b32 v25, 3, v1')
        e('s_lshl_b32 s13, s3, 9')
        e('v_add_u32 v24, s13, v25')
        e('v_lshlrev_b32 v26, 17, v10')
        e('v_lshl_add_u32 v26, v2, 4, v26')
        e('s_lshl_b32 s13, s9, 2')
        e('s_add_u32 s13, s13, s3')
        e('s_lshl_b32 s13, s13, 12')
        e('s_lshl_b32 s14, s10, 6')
        e('s_add_u32 s13, s13, s14')
        e(f's_add_u32 s13, s13, {INBOX2}')
        e('v_add_u32 v26, s13, v26')
        e('s_lshl_b32 s13, s3, 12')
        e('v_add_u32 v30, s13, v29')
        a.label('L_pv', pad=False)
    def c_mlx():
        e('s_waitcnt lgkmcnt(0)')
        e('s_barrier')
        for j in range(4): e(f'ds_read_b128 v[{32+4*j}:{35+4*j}], v19 offset:{L_ML + 16*j}')
        e('s_waitcnt lgkmcnt(0)')
        e('v_max3_f32 v58, v32, v34, v36')
        e('v_max3_f32 v59, v38, v40, v42')
        e('v_max3_f32 v58, v58, v44, v46')
        e('v_max_f32 v58, v58, v59')
        e('v_sub_f32 v57, v8, v58')
        for w in range(8): e(f'v_sub_f32 v{32+2*w}, v{32+2*w}, v58')
        e('v_exp_f32 v57, v57')
        for w in range(8): e(f'v_exp_f32 v{32+2*w}, v{32+2*w}')
        e('v_mul_f32 v59, v32, v33')
        for w in range(1, 8): e(f'v_fmac_f32 v59, v{32+2*w}, v{33+2*w}')
        e('v_min_u32 v58, -2, v58')
        e('v_min_u32 v59, -2, v59')
        exec_if_wave('eq', 0, '0xffff', '0')
        if not c.NOA: e(f'buffer_store_dwordx2 v[58:59], v21, {SWS}, 0 offen {c.LST}')
        e('s_mov_b64 exec, -1')
        if c.RECLR:
            for r in range(4): e(f'v_mov_b32 v{60+r}, -1')
            e('s_lshr_b32 s13, s3, 1')
            e('s_cmp_eq_u32 s13, 2')
            e('s_cbranch_scc0 L_noreclr')
            e(f'buffer_store_dwordx4 v[60:63], v20, {SWS}, 0 offen {c.LST}')
            a.label('L_noreclr', pad=False)
    def wreg(kk, half): return 32 + (kk * 2 + half) * 2
    def pv(i):
        t, rr = i // 4, i % 4
        swait(32 + i)
        vr = vreg(t, rr); pb = 192 + 2 * i
        for half in range(2):
            d = 48 + 4 * half
            cc = '0' if i == 0 else f'v[{d}:{d+3}]'
            e(f'v_mfma_f32_16x16x16_bf16 v[{d}:{d+3}], v[{vr+2*half}:{vr+2*half+1}], v[{pb}:{pb+1}], {cc}')
    N2 = c.N2
    chunks = [(c.X, 1, c_qfrag)]
    for t in range(8):
        chunks.append((4 * t + 3 + N2, 1, (lambda t=t: qk(t))))
        if t: chunks.append((0, 2, (lambda t=t: qkfix(t - 1))))
    chunks.append((0, 3, lambda: qkfix(7)))
    chunks.append((0, 1, c_max))
    for t in range(8): chunks.append((0, 2, (lambda t=t: c_exp(t))))
    chunks.append((0, 1, c_lred))
    chunks.append((0, 4, c_prep))
    BUD = c.BUD
    ci = 0; pvi = 0
    mlx_done = False
    for idx in range(c.X, 64):
        if idx >= 48:
            need_t = (idx - 48) // 4
            while ci < len(chunks) and ci <= 2 * need_t + 1:
                chunks[ci][2](); ci += 1
        a.vm_pace(N2 if idx < c.X3 else c.N3)
        issue(idx)
        if c.STAMPS == 2 and idx in (24, 32, 40, 48, 56, 63): stamp({24: 3, 32: 7, 40: 8, 48: 9, 56: 10, 63: 1}[idx])
        bud = BUD
        while ci < len(chunks) and chunks[ci][0] <= idx and bud > 0:
            bud -= chunks[ci][1]; chunks[ci][2](); ci += 1
        if ci == len(chunks) and idx >= c.XB and not mlx_done:
            c_mlx(); mlx_done = True
        if ci == len(chunks):
            n = 0
            while pvi < 32 and 32 + pvi <= idx - (N2 if idx < c.X3 else c.N3) and n < c.PVR:
                pv(pvi); pvi += 1; n += 1
    while ci < len(chunks):
        chunks[ci][2](); ci += 1
    if not mlx_done: c_mlx()
    while pvi < 32:
        pv(pvi); pvi += 1
    stamp(6)
    for r in range(8): e(f'v_mul_f32 v{48+r}, v{48+r}, v57')
    e(f'ds_write_b128 v16, v[48:51] offset:{L_ACC}')
    e(f'ds_write_b128 v16, v[52:55] offset:{L_ACC+1024}')
    e('s_waitcnt lgkmcnt(0)')
    e('s_barrier')
    e('s_cmp_lt_u32 s3, 4')
    e('s_cbranch_scc1 L_stageC')
    if c.PRIO: e(f's_setprio {c.PRIO}')
    for w in range(8): e(f'ds_read_b128 v[{64+4*w}:{67+4*w}], v18 offset:{L_ACC + w*2048}')
    for w in range(1, 8):
        e(f's_waitcnt lgkmcnt({7-w})')
        for r in range(4): e(f'v_add_f32 v{64+r}, v{64+r}, v{64+4*w+r}')
    for r in range(4): e(f'v_min_u32 v{64+r}, -2, v{64+r}')
    e('s_cmp_ge_u32 s3, 6')
    e('s_cbranch_scc1 L_stageAB')
    if not c.NOA: e(f'buffer_store_dwordx4 v[64:67], v20, {SWS}, 0 offen {c.LST}')
    stamp(7)
    e('s_cmp_lg_u32 s3, 4')
    e(f's_cbranch_scc1 {LEND}')
    e('s_barrier')
    groups = [([f'buffer_load_dwordx4 v[{72+4*j}:{75+4*j}], v27, {SWS}, 0 offen offset:{1024*j} {c.H2LD}' for j in (hh, hh + 2)], [72 + 4 * hh, 80 + 4 * hh]) for hh in range(2)]
    pipe_poll('poll2', groups, 'tag', [8, 9, 10, 11], c.PD2, c.SPIN, 'L_poll2_done', c.PS2)
    a.label('L_poll2_done', pad=False)
    stamp(10)
    e('v_add_f32 v64, v72, v76')
    e('v_add_f32 v65, v73, v77')
    e('v_add_f32 v66, v80, v84')
    e('v_add_f32 v67, v81, v85')
    for r in range(4): e(f'v_add_f32_dpp v{68+r}, v{64+r}, v{64+r} row_ror:8 row_mask:0xf bank_mask:0xf')
    for r in range(4): e(f'v_add_f32_dpp v{64+r}, v{68+r}, v{68+r} row_ror:4 row_mask:0xf bank_mask:0xf')
    for r in range(4): e(f'v_mov_b32 v{68+r}, v{64+r}')
    for r in range(4): e(f'v_permlane16_swap_b32 v{64+r}, v{68+r}')
    for r in range(4): e(f'v_add_f32 v{64+r}, v{64+r}, v{68+r}')
    for r in range(4): e(f'v_mov_b32 v{68+r}, v{64+r}')
    for r in range(4): e(f'v_permlane32_swap_b32 v{64+r}, v{68+r}')
    for r in range(4): e(f'v_add_f32 v{64+r}, v{64+r}, v{68+r}')
    e('v_cvt_pk_bf16_f32 v60, v64, v65')
    e('v_cvt_pk_bf16_f32 v61, v66, v67')
    e('v_mov_b32 v62, s74')
    e('v_mov_b32 v63, s75')
    e(f'v_mov_b32 v8, {EPOCH}')
    e('s_mov_b32 exec_lo, 0xf')
    e('s_mov_b32 exec_hi, 0')
    e(f'buffer_store_dwordx2 v[60:61], v28, {SOUT}, 0 offen')
    e('s_cmp_eq_u32 s2, 0')
    e('s_cselect_b32 exec_lo, 1, 0')
    e(f'buffer_store_dwordx2 v[62:63], v8, {SWS}, 0 offen')
    e(f's_branch {LEND}')
    a.label('L_stageAB', pad=False)
    e(f'buffer_store_dwordx4 v[64:67], v20, {SWS}, s12 offen sc1')
    exec_if_wave('eq', 6, '0xffff', '0')
    e(f'buffer_store_dwordx2 v[58:59], v21, {SWS}, s12 offen sc1')
    e(f's_branch {LEND}')
    a.label('L_stageC', pad=False)
    gml = [([f'buffer_load_dwordx4 v[80:83], v23, {SWS}, 0 offen sc1', f'buffer_load_dwordx4 v[84:87], v23, {SWS}, 0 offen offset:16 sc1'], [80, 84])]
    gdat = [([f'buffer_load_dwordx4 v[{64+4*s}:{67+4*s}], v22, {SWS}, {sT(s)} offen sc1'], [64 + 4 * s]) for s in range(4)]
    for x in gml[0][0]: e(x)
    for l, q in gdat:
        for x in l: e(x)
    for q4 in range(4): e(f'ds_read_b128 v[{32+4*q4}:{35+4*q4}], v30 offset:{L_WOF + 1024*q4}')
    e('v_mov_b32 v98, s74')
    e('v_mov_b32 v99, s75')
    e('v_mov_b32 v102, s74')
    e('v_mov_b32 v103, s75')
    e(f's_mov_b64 s[{MASKS[0]}:{MASKS[0]+1}], -1')
    e('s_waitcnt vmcnt(4)')
    poll_check(gml, 'sent', [12, 13])
    e('s_cbranch_scc0 L_pollm_done')
    masked_poll('pollm', gml, 'sent', [12, 13], c.SLP1, ('v23',), c.RA1)
    e('v_max3_f32 v8, v80, v82, v84')
    e('v_max_f32 v8, v8, v86')
    for s in range(4): e(f'v_sub_f32 v{88+s}, v{80+2*s}, v8')
    for s in range(4): e(f'v_exp_f32 v{88+s}, v{88+s}')
    e('v_mul_f32 v9, v88, v81')
    for s in range(1, 4): e(f'v_fmac_f32 v9, v{88+s}, v{81+2*s}')
    e('v_rcp_f32 v9, v9')
    for s in range(4): e(f'v_mul_f32 v{88+s}, v{88+s}, v9')
    pipe_poll('poll1p', gdat, 'sent', [10, 11, 12, 13], c.PD1, max(1, c.RA1 * c.PD1 * c.RAM), 'L_poll1_done', c.PS1, pre=True)
    masked_poll('poll1', gdat, 'sent', [12, 13, 10, 11], c.SLP1, ('v22',), 0)
    stamp(8)
    for r in range(4): e(f'v_mul_f32 v{56+r}, v88, v{64+r}')
    for s in range(1, 4):
        for r in range(4): e(f'v_fmac_f32 v{56+r}, v{88+s}, v{64+4*s+r}')
    e('v_cvt_pk_bf16_f32 v60, v56, v57')
    e('v_cvt_pk_bf16_f32 v61, v58, v59')
    e(f'ds_write_b64 v24, v[60:61] offset:{L_BX}')
    e('s_waitcnt lgkmcnt(0)')
    e('s_barrier')
    for kk in range(4): e(f'ds_read_b64 v[{104+2*kk}:{105+2*kk}], v25 offset:{L_BX + kk*512}')
    for kk in range(4):
        e(f's_waitcnt lgkmcnt({3-kk})')
        for half in range(2):
            d = 48 + 4 * half; w = wreg(kk, half)
            cc = '0' if kk == 0 else f'v[{d}:{d+3}]'
            e(f'v_mfma_f32_16x16x16_bf16 v[{d}:{d+3}], v[{w}:{w+1}], v[{104+2*kk}:{105+2*kk}], {cc}')
    for r in range(4):
        e(f'v_add_f32_dpp v{96+(r>>1)*4+(r&1)}, v{52+r}, v{48+r} row_shl:8 row_mask:0xf bank_mask:0xf bound_ctrl:0')
    e('s_mov_b32 exec_lo, 0x00ff00ff')
    e('s_mov_b32 exec_hi, 0x00ff00ff')
    e(f'buffer_store_dwordx4 v[96:99], v26, {SWS}, 0 offen {c.H2ST}')
    e(f'buffer_store_dwordx4 v[100:103], v26, {SWS}, 0 offen offset:2048 {c.H2ST}')
    stamp(9)
    if c.STAMPS:
        a.label('L_dump', pad=True)
        stamp(11)
        if c.STAMPS == 3:
            e('s_getreg_b32 s86, hwreg(HW_REG_XCC_ID)')
            e('s_getreg_b32 s87, hwreg(HW_REG_HW_ID)')
        e('s_mov_b32 exec_lo, 1')
        e('s_mov_b32 exec_hi, 0')
        e('s_waitcnt lgkmcnt(0)')
        e('s_lshl_b32 s13, s2, 10')
        e('s_lshl_b32 s14, s3, 7')
        e('s_add_u32 s13, s13, s14')
        e(f's_add_u32 s13, s13, {STAMP}')
        e('v_mov_b32 v8, s13')
        for k2 in range(6):
            for j in range(4): e(f'v_mov_b32 v{64+j}, s{76+4*k2+j}')
            e(f'buffer_store_dwordx4 v[64:67], v8, {SWS}, 0 offen offset:{16*k2}')
            e('s_nop 1')
    a.label('L_end', pad=False)
    e('s_endpgm')
    return a

HEADER = """; GQA decode (B=8,Hq=32,Hkv=8,Sk=4096,Dh=128,D=512), single launch, generated by gen.py
; @launch grid=(256,1,1) block=(512,1,1) lds=%d
.amdgcn_target "amdgcn-amd-amdhsa--gfx950"
.text
"""
def footer(nm, sg):
    return f""".section .rodata,"a"
.p2align 6
.amdhsa_kernel {nm}
  .amdhsa_next_free_vgpr 256
  .amdhsa_next_free_sgpr {sg}
  .amdhsa_accum_offset 256
  .amdhsa_group_segment_fixed_size 0
  .amdhsa_kernarg_size 64
  .amdhsa_user_sgpr_count 2
  .amdhsa_user_sgpr_kernarg_segment_ptr 1
  .amdhsa_system_sgpr_workgroup_id_x 1
.end_amdhsa_kernel
"""
if __name__ == '__main__':
    c = Cfg()
    out = sys.argv[1]
    for kv in sys.argv[2:]:
        k, v = kv.split('=')
        setattr(c, k, int(v) if v.lstrip('-').isdigit() else v)
    for k in ('NT','WNT','LST','H2ST','H2LD'):
        v = getattr(c, k)
        setattr(c, k, '' if v == 'none' else v.replace('+', ' '))
    a = gen(c)
    open(out, 'w').write(HEADER % LDS_BYTES + a.text() + footer(c.NAME, 102))
    print('instr lines', len(a.lines), 'nops', a.nops, 'lds', LDS_BYTES)
```

```python
import sys, struct, math, os
from asmlib import Asm
def f32(x): return struct.unpack('<I', struct.pack('<f', x))[0]

class Cfg:
    NI = 3
    NI0 = 16
    X = 20
    WOI = 8
    BUD = 3
    XB = 54
    ROT = 7
    RECLR = 1
    RAM = 2
    TLBW = 0
    QIND = 0
    H2ST = 'sc1'
    H2LD = 'sc1'
    MAPX = 0
    ILV = 1
    PS1 = 1
    PS2 = 0
    PRIO = 3
    DLY = 0
    PD1 = 1
    PD2 = 1
    N3 = 4
    X3 = 48
    PVR = 3
    N = 3
    N0 = 8
    N2 = 4
    MIMIC = 1
    STAMPS = 0
    NT = 'nt'
    WNT = 'nt'
    NAME = 'standalone__gqa_block_cached__decode_kernel'
    SPIN = 200000
    SLP0 = 2
    RA0 = 16
    RA1 = 16
    NOA = 0
    DBGT = 0
    LST = 'none'
    SLP1 = 2
    SLP2 = 2

QRAW = 0
PART1 = 1 << 20
MLG = (1 << 20) + (1 << 19)
INBOX2 = 2 << 20
EPOCH = (3 << 20) + 4096
STAMP = 128 << 20
BOFF = 4 << 20
L_QP = 0
L_ACC = 0
L_WO = 32768
L_QS = 49408
L_ML = 50432
L_BX = 50688
L_WOF = 52736
LDS_BYTES = 52736 + 16384

SX, SK, SV, SWQ, SWO, SOUT, SDBG, SWS = ['s[%d:%d]' % (b, b + 3) for b in (32, 36, 40, 44, 48, 52, 56, 60)]
def sT(t): return '0' if t == 0 else 's%d' % (64 + t)

def gen(c):
    a = Asm(); e = a.e
    nm = c.NAME
    LEND = 'L_dump' if c.STAMPS else 'L_end'
    def stamp(k):
        if c.STAMPS and (c.STAMPS != 4 or k in (0, 6, 11)): e(f's_memrealtime s[{76+2*k}:{77+2*k}]')
    def exec_if_wave(cmp, val, lo='-1', hi='-1'):
        e(f's_cmp_{cmp}_u32 s3, {val}')
        e(f's_cselect_b32 exec_lo, {lo}, 0')
        e(f's_cselect_b32 exec_hi, {hi}, 0')
    MASKS = [0, 24, 26, 28, 30, 56, 58, 14]
    def masked_poll(name, groups, kind, tmp, slp, tog=(), ra=0, hook=None):
        for gi in range(len(groups)): e(f's_mov_b64 s[{MASKS[gi]}:{MASKS[gi]+1}], -1')
        e(f's_mov_b32 s73, {c.SPIN}')
        a.label(f'L_{name}', pad=False)
        for gi, (loads, quads) in enumerate(groups):
            m = MASKS[gi]
            e(f's_mov_b64 exec, s[{m}:{m+1}]')
            e(f's_cbranch_execz L_{name}_s{gi}')
            for l in loads: e(l)
            a.label(f'L_{name}_s{gi}', pad=False)
        e('s_waitcnt vmcnt(0)')
        for gi, (loads, quads) in enumerate(groups):
            m = MASKS[gi]
            t = tmp[gi % len(tmp)]
            e(f's_mov_b64 exec, s[{m}:{m+1}]')
            if kind == 'tag':
                for q in quads:
                    e(f'v_xor_b32 v{q+2}, s74, v{q+2}')
                    e(f'v_xor_b32 v{q+3}, s75, v{q+3}')
                if len(quads) == 1:
                    e(f'v_or_b32 v{t}, v{quads[0]+2}, v{quads[0]+3}')
                else:
                    e(f'v_or3_b32 v{t}, v{quads[0]+2}, v{quads[0]+3}, v{quads[1]+2}')
                    e(f'v_or_b32 v{t}, v{t}, v{quads[1]+3}')
                e(f'v_cmp_ne_u32 s[{m}:{m+1}], 0, v{t}')
            else:
                regs = [q + r for q in quads for r in range(4)]
                e(f'v_max3_u32 v{t}, v{regs[0]}, v{regs[1]}, v{regs[2]}')
                k = 3
                while k < len(regs):
                    if k + 1 < len(regs):
                        e(f'v_max3_u32 v{t}, v{t}, v{regs[k]}, v{regs[k+1]}'); k += 2
                    else:
                        e(f'v_max_u32 v{t}, v{t}, v{regs[k]}'); k += 1
                e(f'v_cmp_eq_u32 s[{m}:{m+1}], -1, v{t}')
        e('s_mov_b64 exec, -1')
        m1 = MASKS[1] if len(groups) > 1 else MASKS[0]
        e(f's_or_b64 vcc, s[{MASKS[0]}:{MASKS[0]+1}], s[{m1}:{m1+1}]')
        for gi in range(2, len(groups)): e(f's_or_b64 vcc, vcc, s[{MASKS[gi]}:{MASKS[gi]+1}]')
        e(f's_cbranch_scc0 L_{name}_done')
        e(f's_sleep {slp}')
        if hook:
            e(f's_cmp_lg_u32 s73, {c.SPIN - ra}')
            e(f's_cbranch_scc1 L_{name}_nohook')
            hook()
            a.label(f'L_{name}_nohook', pad=False)
        if tog:
            e(f's_cmp_le_u32 s73, {c.SPIN - ra}')
            e(f's_cselect_b32 s13, {BOFF}, 0')
            for v in tog: e(f'v_xor_b32 {v}, s13, {v}')
        e('s_sub_u32 s73, s73, 1')
        e('s_cmp_lg_u32 s73, 0')
        e(f's_cbranch_scc1 L_{name}')
        a.label(f'L_{name}_done', pad=False)
        if hook:
            e(f's_cmp_lt_u32 s73, {c.SPIN - ra}')
            e(f's_cbranch_scc1 L_{name}_nohook2')
            hook()
            a.label(f'L_{name}_nohook2', pad=False)
    def poll_check(groups, kind, tmp):
        for gi, (loads, quads) in enumerate(groups):
            m = MASKS[gi]
            t = tmp[(2 * gi) % len(tmp)]; t2 = tmp[(2 * gi + 1) % len(tmp)]
            e(f's_mov_b64 exec, s[{m}:{m+1}]')
            if kind == 'tag':
                e(f'v_xor_b32 v{t}, s74, v{quads[0]+2}')
                e(f'v_xor_b32 v{t2}, s75, v{quads[0]+3}')
                for q in quads[1:]:
                    e(f'v_or_b32 v{t}, v{t}, v{t2}')
                    e(f'v_xor_b32 v{t2}, s74, v{q+2}')
                    e(f'v_or_b32 v{t}, v{t}, v{t2}')
                    e(f'v_xor_b32 v{t2}, s75, v{q+3}')
                e(f'v_or_b32 v{t}, v{t}, v{t2}')
                e(f'v_cmp_ne_u32 s[{m}:{m+1}], 0, v{t}')
            else:
                regs = [q + r for q in quads for r in range(4)]
                e(f'v_max3_u32 v{t}, v{regs[0]}, v{regs[1]}, v{regs[2]}')
                k = 3
                while k < len(regs):
                    if k + 1 < len(regs):
                        e(f'v_max3_u32 v{t}, v{t}, v{regs[k]}, v{regs[k+1]}'); k += 2
                    else:
                        e(f'v_max_u32 v{t}, v{t}, v{regs[k]}'); k += 1
                e(f'v_cmp_eq_u32 s[{m}:{m+1}], -1, v{t}')
        e('s_mov_b64 exec, -1')
        if len(groups) == 1:
            e(f's_or_b64 vcc, s[{MASKS[0]}:{MASKS[0]+1}], s[{MASKS[0]}:{MASKS[0]+1}]')
        else:
            e(f's_or_b64 vcc, s[{MASKS[0]}:{MASKS[0]+1}], s[{MASKS[1]}:{MASKS[1]+1}]')
        for gi in range(2, len(groups)): e(f's_or_b64 vcc, vcc, s[{MASKS[gi]}:{MASKS[gi]+1}]')
    def pipe_poll(name, groups, kind, tmp, depth, rounds, done_label, slp=0, pre=False):
        R = sum(len(l) for l, q in groups)
        for d in range(depth - (1 if pre else 0)):
            for l, q in groups:
                for x in l: e(x)
        for gi in range(len(groups)): e(f's_mov_b64 s[{MASKS[gi]}:{MASKS[gi]+1}], -1')
        e(f's_mov_b32 s73, {rounds}')
        a.label(f'L_{name}', pad=False)
        e(f's_waitcnt vmcnt({R*(depth-1)})')
        poll_check(groups, kind, tmp)
        e(f's_cbranch_scc0 {done_label}')
        if slp: e(f's_sleep {slp}')
        for gi, (loads, quads) in enumerate(groups):
            m = MASKS[gi]
            e(f's_mov_b64 exec, s[{m}:{m+1}]')
            for l in loads: e(l)
        e('s_mov_b64 exec, -1')
        e('s_sub_u32 s73, s73, 1')
        e('s_cmp_lg_u32 s73, 0')
        e(f's_cbranch_scc1 L_{name}')
        e('s_waitcnt vmcnt(0)')
    a.raw(f'.globl {nm}\n.p2align 8\n.type {nm},@function\n{nm}:')
    e('s_cmp_ge_u32 s2, 256')
    e('s_cbranch_scc1 L_end')
    e('s_load_dwordx16 s[16:31], s[0:1], 0')
    if c.DBGT: e('s_memrealtime s[98:99]')
    if c.STAMPS:
        for k in range(76, 100): e(f's_mov_b32 s{k}, 0')
    stamp(0)
    e('v_lshrrev_b32 v1, 6, v0')
    e('v_readfirstlane_b32 s3, v1')
    e('v_and_b32 v1, 63, v0')
    e('v_lshrrev_b32 v2, 4, v1')
    e('v_and_b32 v3, 15, v1')
    e('s_and_b32 s4, s2, 7')
    e('s_lshr_b32 s5, s2, 3')
    if c.MAPX:
        e('s_xor_b32 s4, s4, s5')
        e('s_and_b32 s4, s4, 7')
    e('s_lshr_b32 s6, s5, 2')
    e('s_and_b32 s7, s5, 3')
    e('s_lshr_b32 s8, s5, 3')
    e('s_and_b32 s9, s5, 7')
    e('s_lshl_b32 s10, s4, 2')
    e('s_add_u32 s10, s10, s8')
    for t in range(1, 9): e(f's_mov_b32 s{64+t}, {t*4096}')
    e('s_lshl_b32 s11, s8, 7')
    e('s_lshl_b32 s12, s3, 4')
    e('s_add_u32 s11, s11, s12')
    e('s_lshl_b32 s12, s11, 13')
    e('s_lshl_b32 s13, s4, 10')
    e('s_add_u32 s12, s12, s13')
    e('s_lshl_b32 s13, s9, 7')
    e('s_add_u32 s12, s12, s13')
    e('v_lshrrev_b32 v8, 3, v3')
    e('v_lshl_add_u32 v8, v2, 2, v8')
    e('v_lshlrev_b32 v8, 13, v8')
    e('v_and_b32 v9, 7, v3')
    e('v_lshl_add_u32 v8, v9, 4, v8')
    e('v_add_u32 v8, s12, v8')
    e('v_lshrrev_b32 v9, 2, v3')
    e('v_lshlrev_b32 v9, 10, v9')
    e('v_lshl_add_u32 v9, v2, 3, v9')
    e('s_lshl_b32 s13, s11, 1')
    e('v_add_u32 v9, s13, v9')
    e('s_lshl_b32 s13, s6, 5')
    e('s_lshl_b32 s14, s4, 2')
    e('s_add_u32 s13, s13, s14')
    if not c.ILV: e('s_add_u32 s13, s13, s7')
    e('s_lshl_b32 s13, s13, 18')
    if c.ILV:
        e(f's_lshl_b32 s14, s7, {15 if c.ILV == 1 else 12}')
        e('s_add_u32 s13, s13, s14')
    e(f's_lshl_b32 s14, s3, {14 if c.ILV == 2 else 12}')
    e('s_add_u32 s13, s13, s14')
    e('v_and_b32 v4, 3, v3')
    e('v_bfe_u32 v5, v3, 2, 1')
    e('v_lshl_add_u32 v4, v4, 2, v5')
    e('v_lshlrev_b32 v4, 8, v4')
    e('v_lshl_add_u32 v4, v2, 4, v4')
    e('v_lshrrev_b32 v5, 3, v3')
    e('v_lshl_add_u32 v4, v5, 6, v4')
    e('v_add_u32 v4, s13, v4')
    e('v_lshlrev_b32 v5, 4, v1')
    e('v_add_u32 v5, s13, v5')
    e('s_waitcnt lgkmcnt(0)')
    def srd(base, p, size):
        e(f's_mov_b32 s{base}, s{p}')
        e(f's_and_b32 s{base+1}, s{p+1}, 0xffff')
        e(f's_mov_b32 s{base+2}, {size}')
        e(f's_mov_b32 s{base+3}, 0x20000')
    srd(44, 22, 4 << 20); srd(32, 16, 8192)
    if c.DBGT: srd(92, 28, 256)
    e(f'buffer_load_dwordx4 v[64:67], v8, {SWQ}, 0 offen {c.WNT}')
    e(f'buffer_load_dwordx4 v[68:71], v8, {SWQ}, {sT(4)} offen {c.WNT}')
    e(f'buffer_load_dwordx2 v[72:73], v9, {SX}, 0 offen')
    e(f'buffer_load_dwordx2 v[74:75], v9, {SX}, {sT(1)} offen')
    mk_wq = a.vm_mark()
    srd(36, 18, 64 << 20)
    e(f's_add_u32 s14, s30, {EPOCH}')
    e('s_addc_u32 s15, s31, 0')
    e('s_load_dwordx2 s[74:75], s[14:15], 0')
    srd(48, 24, 4 << 20); srd(40, 20, 64 << 20); srd(52, 26, 8192); srd(60, 30, 256 << 20)
    if c.ROT == 0:
        for j in range(1, 8): e(f's_mov_b32 s{16+j}, {j*(131072 if c.ILV else 32768)}')
    else:
        if c.ROT == 1: e('s_mov_b32 s13, s5')
        elif c.ROT == 2: e('s_add_u32 s13, s5, s4')
        elif c.ROT == 3: e('s_mov_b32 s13, s4')
        elif c.ROT == 4: e('s_mov_b32 s13, s6')
        elif c.ROT == 5:
            e('s_lshl_b32 s13, s7, 1'); e('s_add_u32 s13, s13, s6'); e('s_add_u32 s13, s13, s4')
        elif c.ROT == 6:
            e('s_lshl_b32 s13, s7, 1'); e('s_add_u32 s13, s13, s6')
        elif c.ROT == 7:
            e('s_mul_i32 s13, s6, 3')
        elif c.ROT == 8:
            e('s_lshl_b32 s13, s7, 1')
        elif c.ROT == 9:
            e('s_add_u32 s13, s7, s6')
        elif c.ROT == 10:
            e('s_xor_b32 s13, s6, s4')
        elif c.ROT == 11:
            e('s_lshl_b32 s13, s4, 2'); e('s_add_u32 s13, s13, s6')
        elif c.ROT == 12:
            e('s_sub_u32 s13, 8, s6')
        elif c.ROT == 13:
            e('s_lshr_b32 s13, s6, 1'); e('s_lshl_b32 s13, s13, 1')
        for j in range(8):
            e(f's_add_u32 s14, s13, {j}')
            e('s_and_b32 s14, s14, 7')
            e(f's_lshl_b32 s{16+j}, s14, {17 if c.ILV else 15}')
    def sJ(j): return '0' if (j == 0 and c.ROT == 0) else 's%d' % (16 + j)
    marks = {}
    issued = [0]
    def swait(idx):
        n = issued[0] - (idx + 1)
        assert n >= 0
        e(f's_waitcnt vmcnt({min(n,63)})')
    def kreg(t, kk): return 128 + 16 * t + 4 * kk
    def vreg(t, rr): return (64 + 16 * t + 4 * rr) if t < 4 else (128 + 16 * (t - 4) + 4 * rr)
    def issue(idx):
        if idx < 32:
            t, kk = idx // 4, idx % 4; r = kreg(t, kk)
            e(f'buffer_load_dwordx4 v[{r}:{r+3}], v4, {SK}, {sJ(t)} offen offset:{(kk>>1)*512 + (kk&1)*128} {c.NT}')
        else:
            t, rr = (idx - 32) // 4, idx % 4; r = vreg(t, rr)
            e(f'buffer_load_dwordx4 v[{r}:{r+3}], v5, {SV}, {sJ(t)} offen offset:{rr*1024} {c.NT}')
        marks[idx] = a.vm_mark()
        issued[0] = idx + 1
    for idx in range(c.NI): issue(idx)
    e('v_and_b32 v14, 1, v1')
    e('v_lshlrev_b32 v14, 4, v14')
    e('v_mov_b32 v15, 0xffff')
    e('v_lshlrev_b32 v15, v14, v15')
    e('v_and_b32 v14, 3, v1')
    e('v_cmp_gt_u32 vcc, 2, v14')
    e('v_cndmask_b32 v6, 0, v15, vcc')
    e('v_xor_b32 v7, v15, v6')
    e('s_and_b32 s15, s3, 3')
    e('s_lshl_b32 s13, s10, 7')
    e('s_lshl_b32 s14, s15, 5')
    e('s_add_u32 s13, s13, s14')
    e('s_lshl_b32 s13, s13, 10')
    e('s_lshl_b32 s14, s9, 7')
    e('s_add_u32 s13, s13, s14')
    e('v_lshrrev_b32 v10, 3, v1')
    e('v_and_b32 v11, 7, v1')
    e('v_lshlrev_b32 v12, 10, v10')
    e('v_lshl_add_u32 v12, v11, 4, v12')
    e('v_add_u32 v12, s13, v12')
    e('s_mul_i32 s13, s15, 4128')
    e(f's_add_u32 s13, s13, {L_WO}')
    e('v_lshlrev_b32 v13, 4, v1')
    e('v_add_u32 v13, s13, v13')
    e('v_mov_b32 v14, 0x0c0c0c0c')
    e('s_mov_b32 s13, 0x01000100')
    e('s_mov_b32 s14, 0x03020302')
    e('v_bfi_b32 v84, v6, s13, v14')
    e('v_bfi_b32 v85, v7, s13, v14')
    e('v_bfi_b32 v86, v6, s14, v14')
    e('v_bfi_b32 v87, v7, s14, v14')
    e('s_mov_b32 vcc_lo, 0')
    e('s_mov_b32 vcc_hi, -1')
    e('s_lshl_b32 s13, s3, 12')
    e('v_lshlrev_b32 v14, 4, v1')
    e('v_add_u32 v14, s13, v14')
    def addr_p1(vd, vt, alpha_sgpr):
        e(f'v_lshrrev_b32 {vt}, 5, v1')
        e(f'v_lshlrev_b32 {vd}, 14, {vt}')
        e(f'v_bfe_u32 {vt}, v1, 3, 2')
        e(f'v_lshl_add_u32 {vd}, {vt}, 10, {vd}')
        e(f'v_and_b32 {vt}, 7, v1')
        e(f'v_lshl_add_u32 {vd}, {vt}, 4, {vd}')
        e('s_lshl_b32 s13, s4, 16')
        e('s_lshl_b32 s14, s7, 12')
        e('s_add_u32 s13, s13, s14')
        e('s_lshl_b32 s14, s6, 7')
        e('s_add_u32 s13, s13, s14')
        e(f's_add_u32 s13, s13, {PART1}')
        if alpha_sgpr:
            e(f's_lshl_b32 s14, {alpha_sgpr}, 15')
            e('s_add_u32 s13, s13, s14')
        e(f'v_add_u32 {vd}, s13, {vd}')
    def addr_ml(vm):
        e(f'v_lshlrev_b32 {vm}, 8, v3')
        e('s_lshl_b32 s13, s4, 12')
        e('s_lshl_b32 s14, s6, 5')
        e('s_add_u32 s13, s13, s14')
        e('s_lshl_b32 s14, s7, 3')
        e('s_add_u32 s13, s13, s14')
        e(f's_add_u32 s13, s13, {MLG}')
        e(f'v_add_u32 {vm}, s13, {vm}')
    def addr_inbox(vd):
        e('s_lshl_b32 s13, s2, 12')
        e(f's_add_u32 s13, s13, {INBOX2}')
        e(f'v_lshlrev_b32 {vd}, 4, v1')
        e(f'v_add_u32 {vd}, s13, {vd}')
    a.vm_wait(mk_wq)
    def dq(bg, aa, half): return 96 + ((bg * 2 + aa) * 2 + half) * 4
    k = 0
    for t in range(2):
        for bg in range(2):
            for aa in range(2):
                bt = 88 + 2 * (k % 4); k += 1
                xw = 72 + 2 * bg + t
                e(f'v_perm_b32 v{bt}, v{xw}, v{xw}, v{84+2*aa}')
                e(f'v_perm_b32 v{bt+1}, v{xw}, v{xw}, v{85+2*aa}')
                for half in range(2):
                    d = dq(bg, aa, half); A0 = 64 + 4 * t + 2 * half
                    cc = '0' if t == 0 else f'v[{d}:{d+3}]'
                    e(f'v_mfma_f32_16x16x16_bf16 v[{d}:{d+3}], v[{A0}:{A0+1}], v[{bt}:{bt+1}], {cc}')
    saved_vq = list(a.vq)
    e('s_cmp_lg_u32 s3, 0')
    e('s_cbranch_scc1 L_merge')
    addr_p1('v48', 'v50', None)
    addr_ml('v49')
    for r in range(4): e(f'v_mov_b32 v{52+r}, -1')
    e(f'v_add_u32 v50, {BOFF}, v48')
    e(f'v_add_u32 v51, {BOFF}, v49')
    for va in ('v48', 'v50'):
        e(f'buffer_store_dwordx4 v[52:55], {va}, {SWS}, 0 offen sc1')
        e(f'buffer_store_dwordx4 v[52:55], {va}, {SWS}, {sT(8)} offen sc1')
    e('s_mov_b32 exec_lo, 0xffff')
    e('s_mov_b32 exec_hi, 0')
    for va in ('v49', 'v51'):
        e(f'buffer_store_dwordx2 v[52:53], {va}, {SWS}, 0 offen sc1')
    mk_clr = a.vm_mark()
    e('s_mov_b64 exec, -1')
    for idx in range(c.NI, c.NI0): issue(idx)
    a.label('L_merge', pad=True)
    for bg in range(2):
        for half in range(2):
            d0 = dq(bg, 0, half); d1 = dq(bg, 1, half)
            for r in range(4): e(f'v_cndmask_b32 v{d0+r}, v{d0+r}, v{d1+r}, vcc')
            e(f'ds_write_b128 v14, v[{d0}:{d0+3}] offset:{L_QP + (bg*2+half)*1024}')
    e('s_waitcnt lgkmcnt(0)')
    e('s_barrier')
    stamp(1)
    e('s_mov_b32 s12, %d' % BOFF)
    e('s_add_u32 s74, s74, 1')
    e('s_add_u32 s75, s75, 0x9E3779B9')
    e('s_cmp_lg_u32 s3, 0')
    e('s_cbranch_scc1 L_others')
    e('v_lshlrev_b32 v14, 4, v1')
    for pr in range(2):
        for half in range(2):
            for w in range(8):
                r = 64 + (half * 8 + w) * 4
                e(f'ds_read_b128 v[{r}:{r+3}], v14 offset:{L_QP + w*4096 + (pr*2+half)*1024}')
        if pr == 0:
            e('s_lshl_b32 s13, s4, 17')
            e('s_lshl_b32 s14, s5, 9')
            e('s_add_u32 s13, s13, s14')
            if QRAW: e(f's_add_u32 s13, s13, {QRAW}')
            e('v_bfe_u32 v10, v1, 2, 2')
            e('v_lshlrev_b32 v10, 14, v10')
            e('v_lshl_add_u32 v10, v2, 6, v10')
            e('v_and_b32 v15, 3, v1')
            e('v_lshl_add_u32 v10, v15, 4, v10')
            e('v_add_u32 v56, s13, v10')
            e('v_add_u32 v57, 0x10000, v56')
        e('s_waitcnt lgkmcnt(0)')
        for half in range(2):
            dst = 32 + half * 4
            b0 = 64 + half * 32
            for r in range(4):
                e(f'v_add_f32 v{dst+r}, v{b0+r}, v{b0+4+r}')
            for w in range(2, 8):
                for r in range(4):
                    e(f'v_add_f32 v{dst+r}, v{dst+r}, v{b0+4*w+r}')
        for r in range(4): e(f'v_permlane32_swap_b32 v{32+r}, v{36+r}')
        ga = 40 + pr * 8
        e(f'v_add_f32 v{ga}, v32, v36')
        e(f'v_add_f32 v{ga+1}, v33, v37')
        e(f'v_mov_b32 v{ga+2}, s74')
        e(f'v_mov_b32 v{ga+3}, s75')
        e(f'v_add_f32 v{ga+4}, v34, v38')
        e(f'v_add_f32 v{ga+5}, v35, v39')
        e(f'v_mov_b32 v{ga+6}, s74')
        e(f'v_mov_b32 v{ga+7}, s75')
        va = 'v56' if pr == 0 else 'v57'
        if pr == 0: a.vm_wait(mk_clr)
        if not c.NOA:
            e(f'buffer_store_dwordx4 v[{ga}:{ga+3}], {va}, {SWS}, 0 offen {c.LST}')
            e(f'buffer_store_dwordx4 v[{ga+4}:{ga+7}], {va}, {SWS}, 0 offen offset:256 {c.LST}')
    e('s_lshl_b32 s13, s4, 3')
    e('s_add_u32 s13, s13, s6')
    e('s_lshl_b32 s13, s13, 14')
    if QRAW: e(f's_add_u32 s13, s13, {QRAW}')
    e('v_lshlrev_b32 v14, 9, v2')
    e('v_lshl_add_u32 v14, v3, 4, v14')
    e('v_add_u32 v14, s13, v14')
    e('v_lshlrev_b32 v15, 7, v2')
    e('v_bfe_u32 v10, v1, 2, 1')
    e('v_lshl_add_u32 v15, v10, 6, v15')
    e('v_bfe_u32 v10, v1, 3, 1')
    e('v_lshl_add_u32 v15, v10, 3, v15')
    e('v_and_b32 v10, 3, v1')
    e('v_lshl_add_u32 v15, v10, 1, v15')
    groups = []
    for n in range(8):
        lds = []; qs = []
        for ab in range(2):
            r = 64 + 8 * n + 4 * ab
            lds.append(f'buffer_load_dwordx4 v[{r}:{r+3}], v14, {SWS}, {sT(n//2)} offen offset:{(n%2)*2048 + ab*256} sc1')
            qs.append(r)
        groups.append((lds, qs))
    if c.QIND:
        e('v_and_b32 v10, 31, v1')
        e('v_lshlrev_b32 v10, 9, v10')
        e('v_add_u32 v10, s13, v10')
        gi = [([f'buffer_load_dwordx4 v[64:67], v10, {SWS}, 0 offen offset:496 sc1'], [64])]
        pipe_poll('polli', gi, 'tag', [11, 58], 1, c.QIND, 'L_polli_done', c.SLP0)
        a.label('L_polli_done', pad=False)
    def q_pub_b():
        for pr in range(2):
            ga = 40 + pr * 8; va = 'v56' if pr == 0 else 'v57'
            e(f'buffer_store_dwordx4 v[{ga}:{ga+3}], {va}, {SWS}, s12 offen sc1')
            e(f'buffer_store_dwordx4 v[{ga+4}:{ga+7}], {va}, {SWS}, s12 offen offset:256 sc1')
    masked_poll('poll0', groups, 'tag', [10, 11], c.SLP0, ('v14',), c.RA0, q_pub_b)
    stamp(3)
    for uu in range(2):
        d = 32 + 4 * uu
        def qv(n, rr): return 64 + 8 * n + (rr >> 1) * 4 + (rr & 1)
        for r in range(4): e(f'v_add_f32 v{d+r}, v{qv(uu,r)}, v{qv(2+uu,r)}')
        for r in range(4): e(f'v_add_f32 v{d+r}, v{d+r}, v{qv(4+uu,r)}')
        for r in range(4): e(f'v_add_f32 v{d+r}, v{d+r}, v{qv(6+uu,r)}')
        e(f'v_cvt_pk_bf16_f32 v{60+2*uu}, v{d}, v{d+1}')
        e(f'v_cvt_pk_bf16_f32 v{61+2*uu}, v{d+2}, v{d+3}')
        o = L_QS + uu * 512
        e(f'ds_write_b16 v15, v{60+2*uu} offset:{o}')
        e(f'ds_write_b16_d16_hi v15, v{60+2*uu} offset:{o+16}')
        e(f'ds_write_b16 v15, v{61+2*uu} offset:{o+32}')
        e(f'ds_write_b16_d16_hi v15, v{61+2*uu} offset:{o+48}')
    for idx in range(c.NI0, c.X):
        if idx - c.NI0 >= c.N0: a.vm_pace(c.N0)
        issue(idx)
    stamp(4)
    e('s_waitcnt lgkmcnt(0)')
    e('s_barrier')
    e('s_branch L_main')
    a.vq = saved_vq
    a.label('L_others', pad=False)
    if c.TLBW:
        e(f'v_lshlrev_b32 v48, {17 if c.ILV else 15}, v1')
        e('v_lshlrev_b32 v49, 4, v1')
        e('v_sub_u32 v49, v5, v49')
        e('v_add_u32 v48, v48, v49')
        exec_if_wave('eq', 1, '0xff', '0')
        e(f'buffer_load_dword v50, v48, {SV}, 0 offen {c.NT}')
        e(f'buffer_load_dword v51, v48, {SK}, 0 offen {c.NT}')
        e('s_mov_b64 exec, -1')
    for idx in range(c.NI, c.X):
        a.vm_pace(c.N)
        issue(idx)
        if idx == c.WOI:
            exec_if_wave('ge', 4)
            for t in range(4):
                e(f'buffer_load_dwordx4 v[{32+4*t}:{35+4*t}], v12, {SWO}, {sT(2*t)} offen {c.WNT}')
            mk_wo = a.vm_mark()
            e('s_mov_b64 exec, -1')
    stamp(4)
    a.vm_wait(mk_wo)
    exec_if_wave('ge', 4)
    for t in range(4): e(f'ds_write_b128 v13, v[{32+4*t}:{35+4*t}] offset:{1024*t}')
    e('s_mov_b64 exec, -1')
    e('s_waitcnt lgkmcnt(0)')
    e('s_barrier')
    a.label('L_main', pad=False)
    stamp(2)
    scale = 128 ** -0.5; log2e = math.log2(math.e)
    cexp = log2e if c.MIMIC else scale * log2e
    def c_qfrag():
        e('v_lshrrev_b32 v14, 2, v3')
        e('v_lshlrev_b32 v14, 8, v14')
        e('v_lshl_add_u32 v14, v2, 4, v14')
        e('v_and_b32 v15, 1, v1')
        e('v_lshl_add_u32 v14, v15, 6, v14')
        for hf in range(2):
            e(f'ds_read_b128 v[{16+4*hf}:{19+4*hf}], v14 offset:{L_QS + hf*128}')
        e(f's_mov_b32 s24, {f32(scale):#x}')
        e('s_mov_b32 s25, 0xffff0000')
        e(f's_mov_b32 s26, {f32(cexp):#x}')
        e('s_waitcnt lgkmcnt(0)')
    def qk(t):
        swait(4 * t + 3)
        s = 32 + 4 * t
        y = 24 + 4 * (t % 2)
        for sub in range(2):
            d = s if sub == 0 else y
            for hf in range(2):
                r = kreg(t, sub * 2 + hf)
                cc = '0' if hf == 0 else f'v[{d}:{d+3}]'
                e(f'v_mfma_f32_16x16x32_bf16 v[{d}:{d+3}], v[{r}:{r+3}], v[{16+4*hf}:{19+4*hf}], {cc}')
    def qkfix(t):
        s = 32 + 4 * t
        y = 24 + 4 * (t % 2)
        for r in range(4): e(f'v_permlane32_swap_b32 v{s+r}, v{y+r}')
        for r in range(4): e(f'v_mov_b32_dpp v{s+r}, v{s+r} quad_perm:[0,0,2,2] row_mask:0xf bank_mask:0xf')
        for r in range(4): e(f'v_add_f32_dpp v{s+r}, v{y+r}, v{s+r} quad_perm:[1,1,3,3] row_mask:0xf bank_mask:0xf')
        if c.MIMIC:
            for step in range(8):
                for p in range(2):
                    x0 = s + 2 * p; x1 = x0 + 1; tt = 10 + p
                    e([f'v_cvt_pk_bf16_f32 v{tt}, v{x0}, v{x1}',
                       f'v_lshlrev_b32 v{x0}, 16, v{tt}',
                       f'v_and_b32 v{x1}, s25, v{tt}',
                       f'v_mul_f32 v{x0}, s24, v{x0}',
                       f'v_mul_f32 v{x1}, s24, v{x1}',
                       f'v_cvt_pk_bf16_f32 v{tt}, v{x0}, v{x1}',
                       f'v_lshlrev_b32 v{x0}, 16, v{tt}',
                       f'v_and_b32 v{x1}, s25, v{tt}'][step])
        if t == 0:
            e(f'v_max3_f32 v8, v{s}, v{s+1}, v{s+2}')
            e(f'v_max_f32 v8, v8, v{s+3}')
        else:
            e(f'v_max3_f32 v8, v8, v{s}, v{s+1}')
            e(f'v_max3_f32 v8, v8, v{s+2}, v{s+3}')
    def c_max():
        e('v_mov_b32 v9, v8')
        e('v_permlane32_swap_b32 v8, v9')
        e('v_max_f32 v8, v8, v9')
        e('v_mov_b32 v9, v8')
        e('v_permlane16_swap_b32 v8, v9')
        e('v_max_f32 v8, v8, v9')
        e('v_mul_f32 v8, s26, v8')
        e('v_sub_f32 v10, 0, v8')
        e('v_mov_b32 v9, 0')
        e('v_mov_b32 v11, 0')
    def c_exp(t):
        for r in range(4): e(f'v_fma_f32 v{32+4*t+r}, v{32+4*t+r}, s26, v10')
        for r in range(4): e(f'v_exp_f32 v{32+4*t+r}, v{32+4*t+r}')
        for r in range(4):
            idx = 4 * t + r
            s = 32 + idx; pb = 192 + 2 * idx
            la = 9 if idx % 2 == 0 else 11
            e(f'v_add_f32 v{la}, v{la}, v{s}')
            e(f'v_cvt_pk_bf16_f32 v{s}, v{s}, v{s}')
            e(f'v_and_b32 v{pb}, v6, v{s}')
            e(f'v_and_b32 v{pb+1}, v7, v{s}')
    def c_lred():
        e('v_add_f32 v9, v9, v11')
        e('v_mov_b32 v11, v9')
        e('v_permlane32_swap_b32 v9, v11')
        e('v_add_f32 v9, v9, v11')
        e('v_mov_b32 v11, v9')
        e('v_permlane16_swap_b32 v9, v11')
        e('v_add_f32 v9, v9, v11')
        stamp(5)
        e('s_lshl_b32 s13, s3, 11')
        e('v_lshlrev_b32 v29, 4, v1')
        e('v_add_u32 v16, s13, v29')
        e('s_lshl_b32 s13, s3, 3')
        e('v_add_u32 v17, s13, v29')
        e('s_mov_b32 exec_lo, 0x1111')
        e('s_mov_b32 exec_hi, 0')
        e(f'ds_write_b64 v17, v[8:9] offset:{L_ML}')
        e('s_mov_b64 exec, -1')
    def c_prep():
        addr_ml('v21')
        e('v_bfe_u32 v19, v1, 2, 2')
        e('v_lshlrev_b32 v19, 6, v19')
        e('s_cmp_lt_u32 s3, 4')
        e('s_cbranch_scc1 L_prep03')
        e('v_mul_u32_u24 v10, 4128, v2')
        e('v_lshl_add_u32 v10, v3, 1, v10')
        e('s_and_b32 s14, s3, 3')
        e('s_lshl_b32 s13, s14, 5')
        e('v_add_u32 v10, s13, v10')
        for kk in range(4):
            for half in range(2):
                for r in range(4):
                    e(f'ds_read_u16 v{32 + (kk*2+half)*4 + r}, v10 offset:{L_WO + (8*r + 4*half + kk)*128}')
        e('s_lshl_b32 s13, s14, 12')
        e('v_add_u32 v11, s13, v29')
        e('s_and_b32 s11, s3, 1')
        e('v_and_b32 v18, 1, v1')
        e('v_lshlrev_b32 v18, 10, v18')
        e('v_bfe_u32 v10, v1, 1, 2')
        e('v_lshl_add_u32 v18, v10, 8, v18')
        e('v_bfe_u32 v10, v1, 3, 2')
        e('v_lshl_add_u32 v18, v10, 4, v18')
        e('v_lshrrev_b32 v10, 5, v1')
        e('s_lshl_b32 s13, s11, 1')
        e('v_add_u32 v10, s13, v10')
        e('v_lshl_add_u32 v18, v10, 6, v18')
        addr_p1('v20', 'v10', 's11')
        addr_inbox('v27')
        e('s_lshl_b32 s13, s2, 5')
        e('v_lshlrev_b32 v28, 3, v1')
        e('v_add_u32 v28, s13, v28')
        e('s_waitcnt lgkmcnt(0)')
        for n in range(16): e(f'v_lshl_or_b32 v{32+n}, v{33+2*n}, 16, v{32+2*n}')
        for q4 in range(4): e(f'ds_write_b128 v11, v[{32+4*q4}:{35+4*q4}] offset:{L_WOF + 1024*q4}')
        e('s_branch L_pv')
        a.label('L_prep03', pad=False)
        e('v_and_b32 v10, 7, v1')
        e('v_lshlrev_b32 v22, 7, v10')
        e('v_lshl_add_u32 v22, v2, 5, v22')
        e('v_bfe_u32 v11, v1, 3, 1')
        e('v_lshl_add_u32 v22, v11, 4, v22')
        e('s_lshl_b32 s13, s10, 14')
        e('s_lshl_b32 s14, s3, 10')
        e('s_add_u32 s13, s13, s14')
        e(f's_add_u32 s13, s13, {PART1}')
        e('v_add_u32 v22, s13, v22')
        e('s_lshl_b32 s13, s10, 10')
        e('s_lshl_b32 s14, s3, 8')
        e('s_add_u32 s13, s13, s14')
        e(f's_add_u32 s13, s13, {MLG}')
        e('v_lshlrev_b32 v23, 5, v10')
        e('v_add_u32 v23, s13, v23')
        e('v_lshlrev_b32 v25, 3, v1')
        e('s_lshl_b32 s13, s3, 9')
        e('v_add_u32 v24, s13, v25')
        e('v_lshlrev_b32 v26, 17, v10')
        e('v_lshl_add_u32 v26, v2, 4, v26')
        e('s_lshl_b32 s13, s9, 2')
        e('s_add_u32 s13, s13, s3')
        e('s_lshl_b32 s13, s13, 12')
        e('s_lshl_b32 s14, s10, 6')
        e('s_add_u32 s13, s13, s14')
        e(f's_add_u32 s13, s13, {INBOX2}')
        e('v_add_u32 v26, s13, v26')
        e('s_lshl_b32 s13, s3, 12')
        e('v_add_u32 v30, s13, v29')
        a.label('L_pv', pad=False)
    def c_mlx():
        e('s_waitcnt lgkmcnt(0)')
        e('s_barrier')
        for j in range(4): e(f'ds_read_b128 v[{32+4*j}:{35+4*j}], v19 offset:{L_ML + 16*j}')
        e('s_waitcnt lgkmcnt(0)')
        e('v_max3_f32 v58, v32, v34, v36')
        e('v_max3_f32 v59, v38, v40, v42')
        e('v_max3_f32 v58, v58, v44, v46')
        e('v_max_f32 v58, v58, v59')
        e('v_sub_f32 v57, v8, v58')
        for w in range(8): e(f'v_sub_f32 v{32+2*w}, v{32+2*w}, v58')
        e('v_exp_f32 v57, v57')
        for w in range(8): e(f'v_exp_f32 v{32+2*w}, v{32+2*w}')
        e('v_mul_f32 v59, v32, v33')
        for w in range(1, 8): e(f'v_fmac_f32 v59, v{32+2*w}, v{33+2*w}')
        e('v_min_u32 v58, -2, v58')
        e('v_min_u32 v59, -2, v59')
        exec_if_wave('eq', 0, '0xffff', '0')
        if not c.NOA: e(f'buffer_store_dwordx2 v[58:59], v21, {SWS}, 0 offen {c.LST}')
        e('s_mov_b64 exec, -1')
        if c.RECLR:
            for r in range(4): e(f'v_mov_b32 v{60+r}, -1')
            e('s_lshr_b32 s13, s3, 1')
            e('s_cmp_eq_u32 s13, 2')
            e('s_cbranch_scc0 L_noreclr')
            e(f'buffer_store_dwordx4 v[60:63], v20, {SWS}, 0 offen {c.LST}')
            a.label('L_noreclr', pad=False)
    def wreg(kk, half): return 32 + (kk * 2 + half) * 2
    def pv(i):
        t, rr = i // 4, i % 4
        swait(32 + i)
        vr = vreg(t, rr); pb = 192 + 2 * i
        for half in range(2):
            d = 48 + 4 * half
            cc = '0' if i == 0 else f'v[{d}:{d+3}]'
            e(f'v_mfma_f32_16x16x16_bf16 v[{d}:{d+3}], v[{vr+2*half}:{vr+2*half+1}], v[{pb}:{pb+1}], {cc}')
    N2 = c.N2
    chunks = [(c.X, 1, c_qfrag)]
    for t in range(8):
        chunks.append((4 * t + 3 + N2, 1, (lambda t=t: qk(t))))
        if t: chunks.append((0, 2, (lambda t=t: qkfix(t - 1))))
    chunks.append((0, 3, lambda: qkfix(7)))
    chunks.append((0, 1, c_max))
    for t in range(8): chunks.append((0, 2, (lambda t=t: c_exp(t))))
    chunks.append((0, 1, c_lred))
    chunks.append((0, 4, c_prep))
    BUD = c.BUD
    ci = 0; pvi = 0
    mlx_done = False
    for idx in range(c.X, 64):
        if idx >= 48:
            need_t = (idx - 48) // 4
            while ci < len(chunks) and ci <= 2 * need_t + 1:
                chunks[ci][2](); ci += 1
        a.vm_pace(N2 if idx < c.X3 else c.N3)
        issue(idx)
        if c.STAMPS == 2 and idx in (24, 32, 40, 48, 56, 63): stamp({24: 3, 32: 7, 40: 8, 48: 9, 56: 10, 63: 1}[idx])
        bud = BUD
        while ci < len(chunks) and chunks[ci][0] <= idx and bud > 0:
            bud -= chunks[ci][1]; chunks[ci][2](); ci += 1
        if ci == len(chunks) and idx >= c.XB and not mlx_done:
            c_mlx(); mlx_done = True
        if ci == len(chunks):
            n = 0
            while pvi < 32 and 32 + pvi <= idx - (N2 if idx < c.X3 else c.N3) and n < c.PVR:
                pv(pvi); pvi += 1; n += 1
    while ci < len(chunks):
        chunks[ci][2](); ci += 1
    if not mlx_done: c_mlx()
    while pvi < 32:
        pv(pvi); pvi += 1
    stamp(6)
    for r in range(8): e(f'v_mul_f32 v{48+r}, v{48+r}, v57')
    e(f'ds_write_b128 v16, v[48:51] offset:{L_ACC}')
    e(f'ds_write_b128 v16, v[52:55] offset:{L_ACC+1024}')
    e('s_waitcnt lgkmcnt(0)')
    e('s_barrier')
    e('s_cmp_lt_u32 s3, 4')
    e('s_cbranch_scc1 L_stageC')
    if c.PRIO: e(f's_setprio {c.PRIO}')
    for w in range(8): e(f'ds_read_b128 v[{64+4*w}:{67+4*w}], v18 offset:{L_ACC + w*2048}')
    for w in range(1, 8):
        e(f's_waitcnt lgkmcnt({7-w})')
        for r in range(4): e(f'v_add_f32 v{64+r}, v{64+r}, v{64+4*w+r}')
    for r in range(4): e(f'v_min_u32 v{64+r}, -2, v{64+r}')
    e('s_cmp_ge_u32 s3, 6')
    e('s_cbranch_scc1 L_stageAB')
    if not c.NOA: e(f'buffer_store_dwordx4 v[64:67], v20, {SWS}, 0 offen {c.LST}')
    stamp(7)
    e('s_cmp_lg_u32 s3, 4')
    e(f's_cbranch_scc1 {LEND}')
    e('s_barrier')
    groups = [([f'buffer_load_dwordx4 v[{72+4*j}:{75+4*j}], v27, {SWS}, 0 offen offset:{1024*j} {c.H2LD}' for j in (hh, hh + 2)], [72 + 4 * hh, 80 + 4 * hh]) for hh in range(2)]
    pipe_poll('poll2', groups, 'tag', [8, 9, 10, 11], c.PD2, c.SPIN, 'L_poll2_done', c.PS2)
    a.label('L_poll2_done', pad=False)
    stamp(10)
    e('v_add_f32 v64, v72, v76')
    e('v_add_f32 v65, v73, v77')
    e('v_add_f32 v66, v80, v84')
    e('v_add_f32 v67, v81, v85')
    for r in range(4): e(f'v_add_f32_dpp v{68+r}, v{64+r}, v{64+r} row_ror:8 row_mask:0xf bank_mask:0xf')
    for r in range(4): e(f'v_add_f32_dpp v{64+r}, v{68+r}, v{68+r} row_ror:4 row_mask:0xf bank_mask:0xf')
    for r in range(4): e(f'v_mov_b32 v{68+r}, v{64+r}')
    for r in range(4): e(f'v_permlane16_swap_b32 v{64+r}, v{68+r}')
    for r in range(4): e(f'v_add_f32 v{64+r}, v{64+r}, v{68+r}')
    for r in range(4): e(f'v_mov_b32 v{68+r}, v{64+r}')
    for r in range(4): e(f'v_permlane32_swap_b32 v{64+r}, v{68+r}')
    for r in range(4): e(f'v_add_f32 v{64+r}, v{64+r}, v{68+r}')
    e('v_cvt_pk_bf16_f32 v60, v64, v65')
    e('v_cvt_pk_bf16_f32 v61, v66, v67')
    e('v_mov_b32 v62, s74')
    e('v_mov_b32 v63, s75')
    e(f'v_mov_b32 v8, {EPOCH}')
    e('s_mov_b32 exec_lo, 0xf')
    e('s_mov_b32 exec_hi, 0')
    e(f'buffer_store_dwordx2 v[60:61], v28, {SOUT}, 0 offen')
    e('s_cmp_eq_u32 s2, 0')
    e('s_cselect_b32 exec_lo, 1, 0')
    e(f'buffer_store_dwordx2 v[62:63], v8, {SWS}, 0 offen')
    e(f's_branch {LEND}')
    a.label('L_stageAB', pad=False)
    e(f'buffer_store_dwordx4 v[64:67], v20, {SWS}, s12 offen sc1')
    exec_if_wave('eq', 6, '0xffff', '0')
    e(f'buffer_store_dwordx2 v[58:59], v21, {SWS}, s12 offen sc1')
    e(f's_branch {LEND}')
    a.label('L_stageC', pad=False)
    gml = [([f'buffer_load_dwordx4 v[80:83], v23, {SWS}, 0 offen sc1', f'buffer_load_dwordx4 v[84:87], v23, {SWS}, 0 offen offset:16 sc1'], [80, 84])]
    gdat = [([f'buffer_load_dwordx4 v[{64+4*s}:{67+4*s}], v22, {SWS}, {sT(s)} offen sc1'], [64 + 4 * s]) for s in range(4)]
    for x in gml[0][0]: e(x)
    for l, q in gdat:
        for x in l: e(x)
    for q4 in range(4): e(f'ds_read_b128 v[{32+4*q4}:{35+4*q4}], v30 offset:{L_WOF + 1024*q4}')
    e('v_mov_b32 v98, s74')
    e('v_mov_b32 v99, s75')
    e('v_mov_b32 v102, s74')
    e('v_mov_b32 v103, s75')
    e(f's_mov_b64 s[{MASKS[0]}:{MASKS[0]+1}], -1')
    e('s_waitcnt vmcnt(4)')
    poll_check(gml, 'sent', [12, 13])
    e('s_cbranch_scc0 L_pollm_done')
    masked_poll('pollm', gml, 'sent', [12, 13], c.SLP1, ('v23',), c.RA1)
    e('v_max3_f32 v8, v80, v82, v84')
    e('v_max_f32 v8, v8, v86')
    for s in range(4): e(f'v_sub_f32 v{88+s}, v{80+2*s}, v8')
    for s in range(4): e(f'v_exp_f32 v{88+s}, v{88+s}')
    e('v_mul_f32 v9, v88, v81')
    for s in range(1, 4): e(f'v_fmac_f32 v9, v{88+s}, v{81+2*s}')
    e('v_rcp_f32 v9, v9')
    for s in range(4): e(f'v_mul_f32 v{88+s}, v{88+s}, v9')
    pipe_poll('poll1p', gdat, 'sent', [10, 11, 12, 13], c.PD1, max(1, c.RA1 * c.PD1 * c.RAM), 'L_poll1_done', c.PS1, pre=True)
    masked_poll('poll1', gdat, 'sent', [12, 13, 10, 11], c.SLP1, ('v22',), 0)
    stamp(8)
    for r in range(4): e(f'v_mul_f32 v{56+r}, v88, v{64+r}')
    for s in range(1, 4):
        for r in range(4): e(f'v_fmac_f32 v{56+r}, v{88+s}, v{64+4*s+r}')
    e('v_cvt_pk_bf16_f32 v60, v56, v57')
    e('v_cvt_pk_bf16_f32 v61, v58, v59')
    e(f'ds_write_b64 v24, v[60:61] offset:{L_BX}')
    e('s_waitcnt lgkmcnt(0)')
    e('s_barrier')
    for kk in range(4): e(f'ds_read_b64 v[{104+2*kk}:{105+2*kk}], v25 offset:{L_BX + kk*512}')
    for kk in range(4):
        e(f's_waitcnt lgkmcnt({3-kk})')
        for half in range(2):
            d = 48 + 4 * half; w = wreg(kk, half)
            cc = '0' if kk == 0 else f'v[{d}:{d+3}]'
            e(f'v_mfma_f32_16x16x16_bf16 v[{d}:{d+3}], v[{w}:{w+1}], v[{104+2*kk}:{105+2*kk}], {cc}')
    for r in range(4):
        e(f'v_add_f32_dpp v{96+(r>>1)*4+(r&1)}, v{52+r}, v{48+r} row_shl:8 row_mask:0xf bank_mask:0xf bound_ctrl:0')
    e('s_mov_b32 exec_lo, 0x00ff00ff')
    e('s_mov_b32 exec_hi, 0x00ff00ff')
    e(f'buffer_store_dwordx4 v[96:99], v26, {SWS}, 0 offen {c.H2ST}')
    e(f'buffer_store_dwordx4 v[100:103], v26, {SWS}, 0 offen offset:2048 {c.H2ST}')
    stamp(9)
    if c.STAMPS:
        a.label('L_dump', pad=True)
        stamp(11)
        if c.STAMPS == 3:
            e('s_getreg_b32 s86, hwreg(HW_REG_XCC_ID)')
            e('s_getreg_b32 s87, hwreg(HW_REG_HW_ID)')
        e('s_mov_b32 exec_lo, 1')
        e('s_mov_b32 exec_hi, 0')
        e('s_waitcnt lgkmcnt(0)')
        e('s_lshl_b32 s13, s2, 10')
        e('s_lshl_b32 s14, s3, 7')
        e('s_add_u32 s13, s13, s14')
        e(f's_add_u32 s13, s13, {STAMP}')
        e('v_mov_b32 v8, s13')
        for k2 in range(6):
            for j in range(4): e(f'v_mov_b32 v{64+j}, s{76+4*k2+j}')
            e(f'buffer_store_dwordx4 v[64:67], v8, {SWS}, 0 offen offset:{16*k2}')
            e('s_nop 1')
    a.label('L_end', pad=False)
    e('s_endpgm')
    return a

HEADER = """; GQA decode (B=8,Hq=32,Hkv=8,Sk=4096,Dh=128,D=512), single launch, generated by gen.py
; @launch grid=(256,1,1) block=(512,1,1) lds=%d
.amdgcn_target "amdgcn-amd-amdhsa--gfx950"
.text
"""
def footer(nm, sg):
    return f""".section .rodata,"a"
.p2align 6
.amdhsa_kernel {nm}
  .amdhsa_next_free_vgpr 256
  .amdhsa_next_free_sgpr {sg}
  .amdhsa_accum_offset 256
  .amdhsa_group_segment_fixed_size 0
  .amdhsa_kernarg_size 64
  .amdhsa_user_sgpr_count 2
  .amdhsa_user_sgpr_kernarg_segment_ptr 1
  .amdhsa_system_sgpr_workgroup_id_x 1
.end_amdhsa_kernel
"""
if __name__ == '__main__':
    c = Cfg()
    out = sys.argv[1]
    for kv in sys.argv[2:]:
        k, v = kv.split('=')
        setattr(c, k, int(v) if v.lstrip('-').isdigit() else v)
    for k in ('NT','WNT','LST','H2ST','H2LD'):
        v = getattr(c, k)
        setattr(c, k, '' if v == 'none' else v.replace('+', ' '))
    a = gen(c)
    open(out, 'w').write(HEADER % LDS_BYTES + a.text() + footer(c.NAME, 102))
    print('instr lines', len(a.lines), 'nops', a.nops, 'lds', LDS_BYTES)
```

```python
import sys, struct, math, os
from asmlib import Asm
def f32(x): return struct.unpack('<I', struct.pack('<f', x))[0]

class Cfg:
    NI = 3
    NI0 = 16
    X = 20
    WOI = 8
    BUD = 3
    XB = 54
    ROT = 7
    RECLR = 1
    RAM = 2
    ADAPT = 0
    A0 = 250
    AS = 275
    AW = 4
    ATHR = 112
    ND = 6
    TLBW = 0
    QIND = 0
    H2ST = 'sc1'
    H2LD = 'sc1'
    MAPX = 0
    ILV = 1
    PS1 = 1
    PS2 = 0
    PRIO = 3
    DLY = 0
    PD1 = 1
    PD2 = 1
    N3 = 4
    X3 = 48
    PVR = 3
    N = 3
    N0 = 8
    N2 = 4
    MIMIC = 1
    STAMPS = 0
    NT = 'nt'
    WNT = 'nt'
    NAME = 'standalone__gqa_block_cached__decode_kernel'
    SPIN = 200000
    SLP0 = 2
    RA0 = 16
    RA1 = 16
    NOA = 0
    DBGT = 0
    LST = 'none'
    SLP1 = 2
    SLP2 = 2

QRAW = 0
PART1 = 1 << 20
MLG = (1 << 20) + (1 << 19)
INBOX2 = 2 << 20
EPOCH = (3 << 20) + 4096
STAMP = 128 << 20
BOFF = 4 << 20
L_QP = 0
L_ACC = 0
L_WO = 32768
L_QS = 49408
L_ML = 50432
L_BX = 50688
L_WOF = 52736
LDS_BYTES = 52736 + 16384

SX, SK, SV, SWQ, SWO, SOUT, SDBG, SWS = ['s[%d:%d]' % (b, b + 3) for b in (32, 36, 40, 44, 48, 52, 56, 60)]
def sT(t): return '0' if t == 0 else 's%d' % (64 + t)

def gen(c):
    a = Asm(); e = a.e
    nm = c.NAME
    LEND = 'L_dump' if c.STAMPS else 'L_end'
    def stamp(k):
        if c.STAMPS and (c.STAMPS != 4 or k in (0, 6, 11)): e(f's_memrealtime s[{76+2*k}:{77+2*k}]')
    def exec_if_wave(cmp, val, lo='-1', hi='-1'):
        e(f's_cmp_{cmp}_u32 s3, {val}')
        e(f's_cselect_b32 exec_lo, {lo}, 0')
        e(f's_cselect_b32 exec_hi, {hi}, 0')
    MASKS = [0, 24, 26, 28, 30, 56, 58, 14]
    def masked_poll(name, groups, kind, tmp, slp, tog=(), ra=0, hook=None):
        for gi in range(len(groups)): e(f's_mov_b64 s[{MASKS[gi]}:{MASKS[gi]+1}], -1')
        e(f's_mov_b32 s73, {c.SPIN}')
        a.label(f'L_{name}', pad=False)
        for gi, (loads, quads) in enumerate(groups):
            m = MASKS[gi]
            e(f's_mov_b64 exec, s[{m}:{m+1}]')
            e(f's_cbranch_execz L_{name}_s{gi}')
            for l in loads: e(l)
            a.label(f'L_{name}_s{gi}', pad=False)
        e('s_waitcnt vmcnt(0)')
        for gi, (loads, quads) in enumerate(groups):
            m = MASKS[gi]
            t = tmp[gi % len(tmp)]
            e(f's_mov_b64 exec, s[{m}:{m+1}]')
            if kind == 'tag':
                for q in quads:
                    e(f'v_xor_b32 v{q+2}, s74, v{q+2}')
                    e(f'v_xor_b32 v{q+3}, s75, v{q+3}')
                if len(quads) == 1:
                    e(f'v_or_b32 v{t}, v{quads[0]+2}, v{quads[0]+3}')
                else:
                    e(f'v_or3_b32 v{t}, v{quads[0]+2}, v{quads[0]+3}, v{quads[1]+2}')
                    e(f'v_or_b32 v{t}, v{t}, v{quads[1]+3}')
                e(f'v_cmp_ne_u32 s[{m}:{m+1}], 0, v{t}')
            else:
                regs = [q + r for q in quads for r in range(4)]
                e(f'v_max3_u32 v{t}, v{regs[0]}, v{regs[1]}, v{regs[2]}')
                k = 3
                while k < len(regs):
                    if k + 1 < len(regs):
                        e(f'v_max3_u32 v{t}, v{t}, v{regs[k]}, v{regs[k+1]}'); k += 2
                    else:
                        e(f'v_max_u32 v{t}, v{t}, v{regs[k]}'); k += 1
                e(f'v_cmp_eq_u32 s[{m}:{m+1}], -1, v{t}')
        e('s_mov_b64 exec, -1')
        m1 = MASKS[1] if len(groups) > 1 else MASKS[0]
        e(f's_or_b64 vcc, s[{MASKS[0]}:{MASKS[0]+1}], s[{m1}:{m1+1}]')
        for gi in range(2, len(groups)): e(f's_or_b64 vcc, vcc, s[{MASKS[gi]}:{MASKS[gi]+1}]')
        e(f's_cbranch_scc0 L_{name}_done')
        e(f's_sleep {slp}')
        if hook:
            e(f's_cmp_lg_u32 s73, {c.SPIN - ra}')
            e(f's_cbranch_scc1 L_{name}_nohook')
            hook()
            a.label(f'L_{name}_nohook', pad=False)
        if tog:
            e(f's_cmp_le_u32 s73, {c.SPIN - ra}')
            e(f's_cselect_b32 s13, {BOFF}, 0')
            for v in tog: e(f'v_xor_b32 {v}, s13, {v}')
        e('s_sub_u32 s73, s73, 1')
        e('s_cmp_lg_u32 s73, 0')
        e(f's_cbranch_scc1 L_{name}')
        a.label(f'L_{name}_done', pad=False)
        if hook:
            e(f's_cmp_lt_u32 s73, {c.SPIN - ra}')
            e(f's_cbranch_scc1 L_{name}_nohook2')
            hook()
            a.label(f'L_{name}_nohook2', pad=False)
    def poll_check(groups, kind, tmp):
        for gi, (loads, quads) in enumerate(groups):
            m = MASKS[gi]
            t = tmp[(2 * gi) % len(tmp)]; t2 = tmp[(2 * gi + 1) % len(tmp)]
            e(f's_mov_b64 exec, s[{m}:{m+1}]')
            if kind == 'tag':
                e(f'v_xor_b32 v{t}, s74, v{quads[0]+2}')
                e(f'v_xor_b32 v{t2}, s75, v{quads[0]+3}')
                for q in quads[1:]:
                    e(f'v_or_b32 v{t}, v{t}, v{t2}')
                    e(f'v_xor_b32 v{t2}, s74, v{q+2}')
                    e(f'v_or_b32 v{t}, v{t}, v{t2}')
                    e(f'v_xor_b32 v{t2}, s75, v{q+3}')
                e(f'v_or_b32 v{t}, v{t}, v{t2}')
                e(f'v_cmp_ne_u32 s[{m}:{m+1}], 0, v{t}')
            else:
                regs = [q + r for q in quads for r in range(4)]
                e(f'v_max3_u32 v{t}, v{regs[0]}, v{regs[1]}, v{regs[2]}')
                k = 3
                while k < len(regs):
                    if k + 1 < len(regs):
                        e(f'v_max3_u32 v{t}, v{t}, v{regs[k]}, v{regs[k+1]}'); k += 2
                    else:
                        e(f'v_max_u32 v{t}, v{t}, v{regs[k]}'); k += 1
                e(f'v_cmp_eq_u32 s[{m}:{m+1}], -1, v{t}')
        e('s_mov_b64 exec, -1')
        if len(groups) == 1:
            e(f's_or_b64 vcc, s[{MASKS[0]}:{MASKS[0]+1}], s[{MASKS[0]}:{MASKS[0]+1}]')
        else:
            e(f's_or_b64 vcc, s[{MASKS[0]}:{MASKS[0]+1}], s[{MASKS[1]}:{MASKS[1]+1}]')
        for gi in range(2, len(groups)): e(f's_or_b64 vcc, vcc, s[{MASKS[gi]}:{MASKS[gi]+1}]')
    def pipe_poll(name, groups, kind, tmp, depth, rounds, done_label, slp=0, pre=False):
        R = sum(len(l) for l, q in groups)
        for d in range(depth - (1 if pre else 0)):
            for l, q in groups:
                for x in l: e(x)
        for gi in range(len(groups)): e(f's_mov_b64 s[{MASKS[gi]}:{MASKS[gi]+1}], -1')
        e(f's_mov_b32 s73, {rounds}')
        a.label(f'L_{name}', pad=False)
        e(f's_waitcnt vmcnt({R*(depth-1)})')
        poll_check(groups, kind, tmp)
        e(f's_cbranch_scc0 {done_label}')
        if slp: e(f's_sleep {slp}')
        for gi, (loads, quads) in enumerate(groups):
            m = MASKS[gi]
            e(f's_mov_b64 exec, s[{m}:{m+1}]')
            for l in loads: e(l)
        e('s_mov_b64 exec, -1')
        e('s_sub_u32 s73, s73, 1')
        e('s_cmp_lg_u32 s73, 0')
        e(f's_cbranch_scc1 L_{name}')
        e('s_waitcnt vmcnt(0)')
    a.raw(f'.globl {nm}\n.p2align 8\n.type {nm},@function\n{nm}:')
    e('s_cmp_ge_u32 s2, 256')
    e('s_cbranch_scc1 L_end')
    e('s_load_dwordx16 s[16:31], s[0:1], 0')
    if c.ADAPT == 2: e('s_memrealtime s[100:101]')
    if c.DBGT: e('s_memrealtime s[98:99]')
    if c.STAMPS:
        for k in range(76, 100): e(f's_mov_b32 s{k}, 0')
    stamp(0)
    e('v_lshrrev_b32 v1, 6, v0')
    e('v_readfirstlane_b32 s3, v1')
    e('v_and_b32 v1, 63, v0')
    e('v_lshrrev_b32 v2, 4, v1')
    e('v_and_b32 v3, 15, v1')
    e('s_and_b32 s4, s2, 7')
    e('s_lshr_b32 s5, s2, 3')
    if c.MAPX:
        e('s_xor_b32 s4, s4, s5')
        e('s_and_b32 s4, s4, 7')
    e('s_lshr_b32 s6, s5, 2')
    e('s_and_b32 s7, s5, 3')
    e('s_lshr_b32 s8, s5, 3')
    e('s_and_b32 s9, s5, 7')
    e('s_lshl_b32 s10, s4, 2')
    e('s_add_u32 s10, s10, s8')
    for t in range(1, 9): e(f's_mov_b32 s{64+t}, {t*4096}')
    e('s_lshl_b32 s11, s8, 7')
    e('s_lshl_b32 s12, s3, 4')
    e('s_add_u32 s11, s11, s12')
    e('s_lshl_b32 s12, s11, 13')
    e('s_lshl_b32 s13, s4, 10')
    e('s_add_u32 s12, s12, s13')
    e('s_lshl_b32 s13, s9, 7')
    e('s_add_u32 s12, s12, s13')
    e('v_lshrrev_b32 v8, 3, v3')
    e('v_lshl_add_u32 v8, v2, 2, v8')
    e('v_lshlrev_b32 v8, 13, v8')
    e('v_and_b32 v9, 7, v3')
    e('v_lshl_add_u32 v8, v9, 4, v8')
    e('v_add_u32 v8, s12, v8')
    e('v_lshrrev_b32 v9, 2, v3')
    e('v_lshlrev_b32 v9, 10, v9')
    e('v_lshl_add_u32 v9, v2, 3, v9')
    e('s_lshl_b32 s13, s11, 1')
    e('v_add_u32 v9, s13, v9')
    e('s_lshl_b32 s13, s6, 5')
    e('s_lshl_b32 s14, s4, 2')
    e('s_add_u32 s13, s13, s14')
    if not c.ILV: e('s_add_u32 s13, s13, s7')
    e('s_lshl_b32 s13, s13, 18')
    if c.ILV:
        e(f's_lshl_b32 s14, s7, {15 if c.ILV == 1 else 12}')
        e('s_add_u32 s13, s13, s14')
    e(f's_lshl_b32 s14, s3, {14 if c.ILV == 2 else 12}')
    e('s_add_u32 s13, s13, s14')
    e('v_and_b32 v4, 3, v3')
    e('v_bfe_u32 v5, v3, 2, 1')
    e('v_lshl_add_u32 v4, v4, 2, v5')
    e('v_lshlrev_b32 v4, 8, v4')
    e('v_lshl_add_u32 v4, v2, 4, v4')
    e('v_lshrrev_b32 v5, 3, v3')
    e('v_lshl_add_u32 v4, v5, 6, v4')
    e('v_add_u32 v4, s13, v4')
    e('v_lshlrev_b32 v5, 4, v1')
    e('v_add_u32 v5, s13, v5')
    e('s_waitcnt lgkmcnt(0)')
    def srd(base, p, size):
        e(f's_mov_b32 s{base}, s{p}')
        e(f's_and_b32 s{base+1}, s{p+1}, 0xffff')
        e(f's_mov_b32 s{base+2}, {size}')
        e(f's_mov_b32 s{base+3}, 0x20000')
    srd(44, 22, 4 << 20); srd(32, 16, 8192)
    if c.DBGT: srd(92, 28, 256)
    e(f'buffer_load_dwordx4 v[64:67], v8, {SWQ}, 0 offen {c.WNT}')
    e(f'buffer_load_dwordx4 v[68:71], v8, {SWQ}, {sT(4)} offen {c.WNT}')
    e(f'buffer_load_dwordx2 v[72:73], v9, {SX}, 0 offen')
    e(f'buffer_load_dwordx2 v[74:75], v9, {SX}, {sT(1)} offen')
    mk_wq = a.vm_mark()
    srd(36, 18, 64 << 20)
    e(f's_add_u32 s14, s30, {EPOCH}')
    e('s_addc_u32 s15, s31, 0')
    e('s_load_dwordx2 s[74:75], s[14:15], 0')
    srd(48, 24, 4 << 20); srd(40, 20, 64 << 20); srd(52, 26, 8192); srd(60, 30, 256 << 20)
    if c.ROT == 0:
        for j in range(1, 8): e(f's_mov_b32 s{16+j}, {j*(131072 if c.ILV else 32768)}')
    else:
        if c.ROT == 1: e('s_mov_b32 s13, s5')
        elif c.ROT == 2: e('s_add_u32 s13, s5, s4')
        elif c.ROT == 3: e('s_mov_b32 s13, s4')
        elif c.ROT == 4: e('s_mov_b32 s13, s6')
        elif c.ROT == 5:
            e('s_lshl_b32 s13, s7, 1'); e('s_add_u32 s13, s13, s6'); e('s_add_u32 s13, s13, s4')
        elif c.ROT == 6:
            e('s_lshl_b32 s13, s7, 1'); e('s_add_u32 s13, s13, s6')
        elif c.ROT == 7:
            e('s_mul_i32 s13, s6, 3')
        elif c.ROT == 8:
            e('s_lshl_b32 s13, s7, 1')
        elif c.ROT == 9:
            e('s_add_u32 s13, s7, s6')
        elif c.ROT == 10:
            e('s_xor_b32 s13, s6, s4')
        elif c.ROT == 11:
            e('s_lshl_b32 s13, s4, 2'); e('s_add_u32 s13, s13, s6')
        elif c.ROT == 12:
            e('s_sub_u32 s13, 8, s6')
        elif c.ROT == 13:
            e('s_lshr_b32 s13, s6, 1'); e('s_lshl_b32 s13, s13, 1')
        for j in range(8):
            e(f's_add_u32 s14, s13, {j}')
            e('s_and_b32 s14, s14, 7')
            e(f's_lshl_b32 s{16+j}, s14, {17 if c.ILV else 15}')
    def sJ(j): return '0' if (j == 0 and c.ROT == 0) else 's%d' % (16 + j)
    marks = {}
    issued = [0]
    def swait(idx):
        n = issued[0] - (idx + 1)
        assert n >= 0
        e(f's_waitcnt vmcnt({min(n,63)})')
    def kreg(t, kk): return 128 + 16 * t + 4 * kk
    def vreg(t, rr): return (64 + 16 * t + 4 * rr) if t < 4 else (128 + 16 * (t - 4) + 4 * rr)
    def issue(idx):
        if idx < 32:
            t, kk = idx // 4, idx % 4; r = kreg(t, kk)
            e(f'buffer_load_dwordx4 v[{r}:{r+3}], v4, {SK}, {sJ(t)} offen offset:{(kk>>1)*512 + (kk&1)*128} {c.NT}')
        else:
            t, rr = (idx - 32) // 4, idx % 4; r = vreg(t, rr)
            e(f'buffer_load_dwordx4 v[{r}:{r+3}], v5, {SV}, {sJ(t)} offen offset:{rr*1024} {c.NT}')
        marks[idx] = a.vm_mark()
        issued[0] = idx + 1
    for idx in range(c.NI): issue(idx)
    e('v_and_b32 v14, 1, v1')
    e('v_lshlrev_b32 v14, 4, v14')
    e('v_mov_b32 v15, 0xffff')
    e('v_lshlrev_b32 v15, v14, v15')
    e('v_and_b32 v14, 3, v1')
    e('v_cmp_gt_u32 vcc, 2, v14')
    e('v_cndmask_b32 v6, 0, v15, vcc')
    e('v_xor_b32 v7, v15, v6')
    e('s_and_b32 s15, s3, 3')
    e('s_lshl_b32 s13, s10, 7')
    e('s_lshl_b32 s14, s15, 5')
    e('s_add_u32 s13, s13, s14')
    e('s_lshl_b32 s13, s13, 10')
    e('s_lshl_b32 s14, s9, 7')
    e('s_add_u32 s13, s13, s14')
    e('v_lshrrev_b32 v10, 3, v1')
    e('v_and_b32 v11, 7, v1')
    e('v_lshlrev_b32 v12, 10, v10')
    e('v_lshl_add_u32 v12, v11, 4, v12')
    e('v_add_u32 v12, s13, v12')
    e('s_mul_i32 s13, s15, 4128')
    e(f's_add_u32 s13, s13, {L_WO}')
    e('v_lshlrev_b32 v13, 4, v1')
    e('v_add_u32 v13, s13, v13')
    e('v_mov_b32 v14, 0x0c0c0c0c')
    e('s_mov_b32 s13, 0x01000100')
    e('s_mov_b32 s14, 0x03020302')
    e('v_bfi_b32 v84, v6, s13, v14')
    e('v_bfi_b32 v85, v7, s13, v14')
    e('v_bfi_b32 v86, v6, s14, v14')
    e('v_bfi_b32 v87, v7, s14, v14')
    e('s_mov_b32 vcc_lo, 0')
    e('s_mov_b32 vcc_hi, -1')
    e('s_lshl_b32 s13, s3, 12')
    e('v_lshlrev_b32 v14, 4, v1')
    e('v_add_u32 v14, s13, v14')
    def addr_p1(vd, vt, alpha_sgpr):
        e(f'v_lshrrev_b32 {vt}, 5, v1')
        e(f'v_lshlrev_b32 {vd}, 14, {vt}')
        e(f'v_bfe_u32 {vt}, v1, 3, 2')
        e(f'v_lshl_add_u32 {vd}, {vt}, 10, {vd}')
        e(f'v_and_b32 {vt}, 7, v1')
        e(f'v_lshl_add_u32 {vd}, {vt}, 4, {vd}')
        e('s_lshl_b32 s13, s4, 16')
        e('s_lshl_b32 s14, s7, 12')
        e('s_add_u32 s13, s13, s14')
        e('s_lshl_b32 s14, s6, 7')
        e('s_add_u32 s13, s13, s14')
        e(f's_add_u32 s13, s13, {PART1}')
        if alpha_sgpr:
            e(f's_lshl_b32 s14, {alpha_sgpr}, 15')
            e('s_add_u32 s13, s13, s14')
        e(f'v_add_u32 {vd}, s13, {vd}')
    def addr_ml(vm):
        e(f'v_lshlrev_b32 {vm}, 8, v3')
        e('s_lshl_b32 s13, s4, 12')
        e('s_lshl_b32 s14, s6, 5')
        e('s_add_u32 s13, s13, s14')
        e('s_lshl_b32 s14, s7, 3')
        e('s_add_u32 s13, s13, s14')
        e(f's_add_u32 s13, s13, {MLG}')
        e(f'v_add_u32 {vm}, s13, {vm}')
    def addr_inbox(vd):
        e('s_lshl_b32 s13, s2, 12')
        e(f's_add_u32 s13, s13, {INBOX2}')
        e(f'v_lshlrev_b32 {vd}, 4, v1')
        e(f'v_add_u32 {vd}, s13, {vd}')
    a.vm_wait(mk_wq)
    def dq(bg, aa, half): return 96 + ((bg * 2 + aa) * 2 + half) * 4
    k = 0
    for t in range(2):
        for bg in range(2):
            for aa in range(2):
                bt = 88 + 2 * (k % 4); k += 1
                xw = 72 + 2 * bg + t
                e(f'v_perm_b32 v{bt}, v{xw}, v{xw}, v{84+2*aa}')
                e(f'v_perm_b32 v{bt+1}, v{xw}, v{xw}, v{85+2*aa}')
                for half in range(2):
                    d = dq(bg, aa, half); A0 = 64 + 4 * t + 2 * half
                    cc = '0' if t == 0 else f'v[{d}:{d+3}]'
                    e(f'v_mfma_f32_16x16x16_bf16 v[{d}:{d+3}], v[{A0}:{A0+1}], v[{bt}:{bt+1}], {cc}')
    saved_vq = list(a.vq)
    e('s_cmp_lg_u32 s3, 0')
    e('s_cbranch_scc1 L_merge')
    addr_p1('v48', 'v50', None)
    addr_ml('v49')
    for r in range(4): e(f'v_mov_b32 v{52+r}, -1')
    e(f'v_add_u32 v50, {BOFF}, v48')
    e(f'v_add_u32 v51, {BOFF}, v49')
    for va in ('v48', 'v50'):
        e(f'buffer_store_dwordx4 v[52:55], {va}, {SWS}, 0 offen sc1')
        e(f'buffer_store_dwordx4 v[52:55], {va}, {SWS}, {sT(8)} offen sc1')
    e('s_mov_b32 exec_lo, 0xffff')
    e('s_mov_b32 exec_hi, 0')
    for va in ('v49', 'v51'):
        e(f'buffer_store_dwordx2 v[52:53], {va}, {SWS}, 0 offen sc1')
    mk_clr = a.vm_mark()
    e('s_mov_b64 exec, -1')
    for idx in range(c.NI, c.NI0): issue(idx)
    a.label('L_merge', pad=True)
    for bg in range(2):
        for half in range(2):
            d0 = dq(bg, 0, half); d1 = dq(bg, 1, half)
            for r in range(4): e(f'v_cndmask_b32 v{d0+r}, v{d0+r}, v{d1+r}, vcc')
            e(f'ds_write_b128 v14, v[{d0}:{d0+3}] offset:{L_QP + (bg*2+half)*1024}')
    e('s_waitcnt lgkmcnt(0)')
    e('s_barrier')
    stamp(1)
    e('s_mov_b32 s12, %d' % BOFF)
    e('s_add_u32 s74, s74, 1')
    e('s_add_u32 s75, s75, 0x9E3779B9')
    e('s_cmp_lg_u32 s3, 0')
    e('s_cbranch_scc1 L_others')
    e('v_lshlrev_b32 v14, 4, v1')
    for pr in range(2):
        for half in range(2):
            for w in range(8):
                r = 64 + (half * 8 + w) * 4
                e(f'ds_read_b128 v[{r}:{r+3}], v14 offset:{L_QP + w*4096 + (pr*2+half)*1024}')
        if pr == 0:
            e('s_lshl_b32 s13, s4, 17')
            e('s_lshl_b32 s14, s5, 9')
            e('s_add_u32 s13, s13, s14')
            if QRAW: e(f's_add_u32 s13, s13, {QRAW}')
            e('v_bfe_u32 v10, v1, 2, 2')
            e('v_lshlrev_b32 v10, 14, v10')
            e('v_lshl_add_u32 v10, v2, 6, v10')
            e('v_and_b32 v15, 3, v1')
            e('v_lshl_add_u32 v10, v15, 4, v10')
            e('v_add_u32 v56, s13, v10')
            e('v_add_u32 v57, 0x10000, v56')
        e('s_waitcnt lgkmcnt(0)')
        for half in range(2):
            dst = 32 + half * 4
            b0 = 64 + half * 32
            for r in range(4):
                e(f'v_add_f32 v{dst+r}, v{b0+r}, v{b0+4+r}')
            for w in range(2, 8):
                for r in range(4):
                    e(f'v_add_f32 v{dst+r}, v{dst+r}, v{b0+4*w+r}')
        for r in range(4): e(f'v_permlane32_swap_b32 v{32+r}, v{36+r}')
        ga = 40 + pr * 8
        e(f'v_add_f32 v{ga}, v32, v36')
        e(f'v_add_f32 v{ga+1}, v33, v37')
        e(f'v_mov_b32 v{ga+2}, s74')
        e(f'v_mov_b32 v{ga+3}, s75')
        e(f'v_add_f32 v{ga+4}, v34, v38')
        e(f'v_add_f32 v{ga+5}, v35, v39')
        e(f'v_mov_b32 v{ga+6}, s74')
        e(f'v_mov_b32 v{ga+7}, s75')
        va = 'v56' if pr == 0 else 'v57'
        if pr == 0: a.vm_wait(mk_clr)
        if not c.NOA:
            e(f'buffer_store_dwordx4 v[{ga}:{ga+3}], {va}, {SWS}, 0 offen {c.LST}')
            e(f'buffer_store_dwordx4 v[{ga+4}:{ga+7}], {va}, {SWS}, 0 offen offset:256 {c.LST}')
    e('s_lshl_b32 s13, s4, 3')
    e('s_add_u32 s13, s13, s6')
    e('s_lshl_b32 s13, s13, 14')
    if QRAW: e(f's_add_u32 s13, s13, {QRAW}')
    e('v_lshlrev_b32 v14, 9, v2')
    e('v_lshl_add_u32 v14, v3, 4, v14')
    e('v_add_u32 v14, s13, v14')
    e('v_lshlrev_b32 v15, 7, v2')
    e('v_bfe_u32 v10, v1, 2, 1')
    e('v_lshl_add_u32 v15, v10, 6, v15')
    e('v_bfe_u32 v10, v1, 3, 1')
    e('v_lshl_add_u32 v15, v10, 3, v15')
    e('v_and_b32 v10, 3, v1')
    e('v_lshl_add_u32 v15, v10, 1, v15')
    groups = []
    for n in range(8):
        lds = []; qs = []
        for ab in range(2):
            r = 64 + 8 * n + 4 * ab
            lds.append(f'buffer_load_dwordx4 v[{r}:{r+3}], v14, {SWS}, {sT(n//2)} offen offset:{(n%2)*2048 + ab*256} sc1')
            qs.append(r)
        groups.append((lds, qs))
    if c.QIND:
        e('v_and_b32 v10, 31, v1')
        e('v_lshlrev_b32 v10, 9, v10')
        e('v_add_u32 v10, s13, v10')
        gi = [([f'buffer_load_dwordx4 v[64:67], v10, {SWS}, 0 offen offset:496 sc1'], [64])]
        pipe_poll('polli', gi, 'tag', [11, 58], 1, c.QIND, 'L_polli_done', c.SLP0)
        a.label('L_polli_done', pad=False)
    def q_pub_b():
        for pr in range(2):
            ga = 40 + pr * 8; va = 'v56' if pr == 0 else 'v57'
            e(f'buffer_store_dwordx4 v[{ga}:{ga+3}], {va}, {SWS}, s12 offen sc1')
            e(f'buffer_store_dwordx4 v[{ga+4}:{ga+7}], {va}, {SWS}, s12 offen offset:256 sc1')
    masked_poll('poll0', groups, 'tag', [10, 11], c.SLP0, ('v14',), c.RA0, q_pub_b)
    stamp(3)
    for uu in range(2):
        d = 32 + 4 * uu
        def qv(n, rr): return 64 + 8 * n + (rr >> 1) * 4 + (rr & 1)
        for r in range(4): e(f'v_add_f32 v{d+r}, v{qv(uu,r)}, v{qv(2+uu,r)}')
        for r in range(4): e(f'v_add_f32 v{d+r}, v{d+r}, v{qv(4+uu,r)}')
        for r in range(4): e(f'v_add_f32 v{d+r}, v{d+r}, v{qv(6+uu,r)}')
        e(f'v_cvt_pk_bf16_f32 v{60+2*uu}, v{d}, v{d+1}')
        e(f'v_cvt_pk_bf16_f32 v{61+2*uu}, v{d+2}, v{d+3}')
        o = L_QS + uu * 512
        e(f'ds_write_b16 v15, v{60+2*uu} offset:{o}')
        e(f'ds_write_b16_d16_hi v15, v{60+2*uu} offset:{o+16}')
        e(f'ds_write_b16 v15, v{61+2*uu} offset:{o+32}')
        e(f'ds_write_b16_d16_hi v15, v{61+2*uu} offset:{o+48}')
    for idx in range(c.NI0, c.X):
        if idx - c.NI0 >= c.N0: a.vm_pace(c.N0)
        issue(idx)
    stamp(4)
    e('s_waitcnt lgkmcnt(0)')
    e('s_barrier')
    e('s_branch L_main')
    a.vq = saved_vq
    a.label('L_others', pad=False)
    if c.TLBW:
        e(f'v_lshlrev_b32 v48, {17 if c.ILV else 15}, v1')
        e('v_lshlrev_b32 v49, 4, v1')
        e('v_sub_u32 v49, v5, v49')
        e('v_add_u32 v48, v48, v49')
        exec_if_wave('eq', 1, '0xff', '0')
        e(f'buffer_load_dword v50, v48, {SV}, 0 offen {c.NT}')
        e(f'buffer_load_dword v51, v48, {SK}, 0 offen {c.NT}')
        e('s_mov_b64 exec, -1')
    for idx in range(c.NI, c.X):
        a.vm_pace(c.N)
        issue(idx)
        if idx == c.WOI:
            exec_if_wave('ge', 4)
            for t in range(4):
                e(f'buffer_load_dwordx4 v[{32+4*t}:{35+4*t}], v12, {SWO}, {sT(2*t)} offen {c.WNT}')
            mk_wo = a.vm_mark()
            e('s_mov_b64 exec, -1')
    stamp(4)
    a.vm_wait(mk_wo)
    exec_if_wave('ge', 4)
    for t in range(4): e(f'ds_write_b128 v13, v[{32+4*t}:{35+4*t}] offset:{1024*t}')
    e('s_mov_b64 exec, -1')
    e('s_waitcnt lgkmcnt(0)')
    e('s_barrier')
    a.label('L_main', pad=False)
    stamp(2)
    scale = 128 ** -0.5; log2e = math.log2(math.e)
    cexp = log2e if c.MIMIC else scale * log2e
    def c_qfrag():
        e('v_lshrrev_b32 v14, 2, v3')
        e('v_lshlrev_b32 v14, 8, v14')
        e('v_lshl_add_u32 v14, v2, 4, v14')
        e('v_and_b32 v15, 1, v1')
        e('v_lshl_add_u32 v14, v15, 6, v14')
        for hf in range(2):
            e(f'ds_read_b128 v[{16+4*hf}:{19+4*hf}], v14 offset:{L_QS + hf*128}')
        e(f's_mov_b32 s24, {f32(scale):#x}')
        e('s_mov_b32 s25, 0xffff0000')
        e(f's_mov_b32 s26, {f32(cexp):#x}')
        e('s_waitcnt lgkmcnt(0)')
    def qk(t):
        swait(4 * t + 3)
        s = 32 + 4 * t
        y = 24 + 4 * (t % 2)
        for sub in range(2):
            d = s if sub == 0 else y
            for hf in range(2):
                r = kreg(t, sub * 2 + hf)
                cc = '0' if hf == 0 else f'v[{d}:{d+3}]'
                e(f'v_mfma_f32_16x16x32_bf16 v[{d}:{d+3}], v[{r}:{r+3}], v[{16+4*hf}:{19+4*hf}], {cc}')
    def qkfix(t):
        s = 32 + 4 * t
        y = 24 + 4 * (t % 2)
        for r in range(4): e(f'v_permlane32_swap_b32 v{s+r}, v{y+r}')
        for r in range(4): e(f'v_mov_b32_dpp v{s+r}, v{s+r} quad_perm:[0,0,2,2] row_mask:0xf bank_mask:0xf')
        for r in range(4): e(f'v_add_f32_dpp v{s+r}, v{y+r}, v{s+r} quad_perm:[1,1,3,3] row_mask:0xf bank_mask:0xf')
        if c.MIMIC:
            for step in range(8):
                for p in range(2):
                    x0 = s + 2 * p; x1 = x0 + 1; tt = 10 + p
                    e([f'v_cvt_pk_bf16_f32 v{tt}, v{x0}, v{x1}',
                       f'v_lshlrev_b32 v{x0}, 16, v{tt}',
                       f'v_and_b32 v{x1}, s25, v{tt}',
                       f'v_mul_f32 v{x0}, s24, v{x0}',
                       f'v_mul_f32 v{x1}, s24, v{x1}',
                       f'v_cvt_pk_bf16_f32 v{tt}, v{x0}, v{x1}',
                       f'v_lshlrev_b32 v{x0}, 16, v{tt}',
                       f'v_and_b32 v{x1}, s25, v{tt}'][step])
        if t == 0:
            e(f'v_max3_f32 v8, v{s}, v{s+1}, v{s+2}')
            e(f'v_max_f32 v8, v8, v{s+3}')
        else:
            e(f'v_max3_f32 v8, v8, v{s}, v{s+1}')
            e(f'v_max3_f32 v8, v8, v{s+2}, v{s+3}')
    def c_max():
        e('v_mov_b32 v9, v8')
        e('v_permlane32_swap_b32 v8, v9')
        e('v_max_f32 v8, v8, v9')
        e('v_mov_b32 v9, v8')
        e('v_permlane16_swap_b32 v8, v9')
        e('v_max_f32 v8, v8, v9')
        e('v_mul_f32 v8, s26, v8')
        e('v_sub_f32 v10, 0, v8')
        e('v_mov_b32 v9, 0')
        e('v_mov_b32 v11, 0')
    def c_exp(t):
        for r in range(4): e(f'v_fma_f32 v{32+4*t+r}, v{32+4*t+r}, s26, v10')
        for r in range(4): e(f'v_exp_f32 v{32+4*t+r}, v{32+4*t+r}')
        for r in range(4):
            idx = 4 * t + r
            s = 32 + idx; pb = 192 + 2 * idx
            la = 9 if idx % 2 == 0 else 11
            e(f'v_add_f32 v{la}, v{la}, v{s}')
            e(f'v_cvt_pk_bf16_f32 v{s}, v{s}, v{s}')
            e(f'v_and_b32 v{pb}, v6, v{s}')
            e(f'v_and_b32 v{pb+1}, v7, v{s}')
    def c_lred():
        e('v_add_f32 v9, v9, v11')
        e('v_mov_b32 v11, v9')
        e('v_permlane32_swap_b32 v9, v11')
        e('v_add_f32 v9, v9, v11')
        e('v_mov_b32 v11, v9')
        e('v_permlane16_swap_b32 v9, v11')
        e('v_add_f32 v9, v9, v11')
        stamp(5)
        e('s_lshl_b32 s13, s3, 11')
        e('v_lshlrev_b32 v29, 4, v1')
        e('v_add_u32 v16, s13, v29')
        e('s_lshl_b32 s13, s3, 3')
        e('v_add_u32 v17, s13, v29')
        e('s_mov_b32 exec_lo, 0x1111')
        e('s_mov_b32 exec_hi, 0')
        e(f'ds_write_b64 v17, v[8:9] offset:{L_ML}')
        e('s_mov_b64 exec, -1')
    def c_prep():
        addr_ml('v21')
        e('v_bfe_u32 v19, v1, 2, 2')
        e('v_lshlrev_b32 v19, 6, v19')
        e('s_cmp_lt_u32 s3, 4')
        e('s_cbranch_scc1 L_prep03')
        e('v_mul_u32_u24 v10, 4128, v2')
        e('v_lshl_add_u32 v10, v3, 1, v10')
        e('s_and_b32 s14, s3, 3')
        e('s_lshl_b32 s13, s14, 5')
        e('v_add_u32 v10, s13, v10')
        for kk in range(4):
            for half in range(2):
                for r in range(4):
                    e(f'ds_read_u16 v{32 + (kk*2+half)*4 + r}, v10 offset:{L_WO + (8*r + 4*half + kk)*128}')
        e('s_lshl_b32 s13, s14, 12')
        e('v_add_u32 v11, s13, v29')
        e('s_and_b32 s11, s3, 1')
        e('v_and_b32 v18, 1, v1')
        e('v_lshlrev_b32 v18, 10, v18')
        e('v_bfe_u32 v10, v1, 1, 2')
        e('v_lshl_add_u32 v18, v10, 8, v18')
        e('v_bfe_u32 v10, v1, 3, 2')
        e('v_lshl_add_u32 v18, v10, 4, v18')
        e('v_lshrrev_b32 v10, 5, v1')
        e('s_lshl_b32 s13, s11, 1')
        e('v_add_u32 v10, s13, v10')
        e('v_lshl_add_u32 v18, v10, 6, v18')
        addr_p1('v20', 'v10', 's11')
        addr_inbox('v27')
        e('s_lshl_b32 s13, s2, 5')
        e('v_lshlrev_b32 v28, 3, v1')
        e('v_add_u32 v28, s13, v28')
        e('s_waitcnt lgkmcnt(0)')
        for n in range(16): e(f'v_lshl_or_b32 v{32+n}, v{33+2*n}, 16, v{32+2*n}')
        for q4 in range(4): e(f'ds_write_b128 v11, v[{32+4*q4}:{35+4*q4}] offset:{L_WOF + 1024*q4}')
        e('s_branch L_pv')
        a.label('L_prep03', pad=False)
        e('v_and_b32 v10, 7, v1')
        e('v_lshlrev_b32 v22, 7, v10')
        e('v_lshl_add_u32 v22, v2, 5, v22')
        e('v_bfe_u32 v11, v1, 3, 1')
        e('v_lshl_add_u32 v22, v11, 4, v22')
        e('s_lshl_b32 s13, s10, 14')
        e('s_lshl_b32 s14, s3, 10')
        e('s_add_u32 s13, s13, s14')
        e(f's_add_u32 s13, s13, {PART1}')
        e('v_add_u32 v22, s13, v22')
        e('s_lshl_b32 s13, s10, 10')
        e('s_lshl_b32 s14, s3, 8')
        e('s_add_u32 s13, s13, s14')
        e(f's_add_u32 s13, s13, {MLG}')
        e('v_lshlrev_b32 v23, 5, v10')
        e('v_add_u32 v23, s13, v23')
        e('v_lshlrev_b32 v25, 3, v1')
        e('s_lshl_b32 s13, s3, 9')
        e('v_add_u32 v24, s13, v25')
        e('v_lshlrev_b32 v26, 17, v10')
        e('v_lshl_add_u32 v26, v2, 4, v26')
        e('s_lshl_b32 s13, s9, 2')
        e('s_add_u32 s13, s13, s3')
        e('s_lshl_b32 s13, s13, 12')
        e('s_lshl_b32 s14, s10, 6')
        e('s_add_u32 s13, s13, s14')
        e(f's_add_u32 s13, s13, {INBOX2}')
        e('v_add_u32 v26, s13, v26')
        e('s_lshl_b32 s13, s3, 12')
        e('v_add_u32 v30, s13, v29')
        a.label('L_pv', pad=False)
    def c_mlx():
        e('s_waitcnt lgkmcnt(0)')
        e('s_barrier')
        for j in range(4): e(f'ds_read_b128 v[{32+4*j}:{35+4*j}], v19 offset:{L_ML + 16*j}')
        e('s_waitcnt lgkmcnt(0)')
        e('v_max3_f32 v58, v32, v34, v36')
        e('v_max3_f32 v59, v38, v40, v42')
        e('v_max3_f32 v58, v58, v44, v46')
        e('v_max_f32 v58, v58, v59')
        e('v_sub_f32 v57, v8, v58')
        for w in range(8): e(f'v_sub_f32 v{32+2*w}, v{32+2*w}, v58')
        e('v_exp_f32 v57, v57')
        for w in range(8): e(f'v_exp_f32 v{32+2*w}, v{32+2*w}')
        e('v_mul_f32 v59, v32, v33')
        for w in range(1, 8): e(f'v_fmac_f32 v59, v{32+2*w}, v{33+2*w}')
        e('v_min_u32 v58, -2, v58')
        e('v_min_u32 v59, -2, v59')
        exec_if_wave('eq', 0, '0xffff', '0')
        if not c.NOA: e(f'buffer_store_dwordx2 v[58:59], v21, {SWS}, 0 offen {c.LST}')
        e('s_mov_b64 exec, -1')
        if c.RECLR:
            for r in range(4): e(f'v_mov_b32 v{60+r}, -1')
            e('s_lshr_b32 s13, s3, 1')
            e('s_cmp_eq_u32 s13, 2')
            e('s_cbranch_scc0 L_noreclr')
            e(f'buffer_store_dwordx4 v[60:63], v20, {SWS}, 0 offen {c.LST}')
            a.label('L_noreclr', pad=False)
    def wreg(kk, half): return 32 + (kk * 2 + half) * 2
    def pv(i):
        t, rr = i // 4, i % 4
        swait(32 + i)
        vr = vreg(t, rr); pb = 192 + 2 * i
        for half in range(2):
            d = 48 + 4 * half
            cc = '0' if i == 0 else f'v[{d}:{d+3}]'
            e(f'v_mfma_f32_16x16x16_bf16 v[{d}:{d+3}], v[{vr+2*half}:{vr+2*half+1}], v[{pb}:{pb+1}], {cc}')
    N2 = c.N2
    chunks = [(c.X, 1, c_qfrag)]
    for t in range(8):
        chunks.append((4 * t + 3 + (c.ND if c.ADAPT else N2), 1, (lambda t=t: qk(t))))
        if t: chunks.append((0, 2, (lambda t=t: qkfix(t - 1))))
    chunks.append((0, 3, lambda: qkfix(7)))
    chunks.append((0, 1, c_max))
    for t in range(8): chunks.append((0, 2, (lambda t=t: c_exp(t))))
    chunks.append((0, 1, c_lred))
    chunks.append((0, 4, c_prep))
    BUD = c.BUD
    ci = 0; pvi = 0
    mlx_done = False
    for idx in range(c.X, 64):
        if idx >= 48:
            need_t = (idx - 48) // 4
            while ci < len(chunks) and ci <= 2 * need_t + 1:
                chunks[ci][2](); ci += 1
        if c.ADAPT:
            if (idx - c.X) % c.AW == 0:
                e('s_memrealtime s[28:29]')
                e('s_waitcnt lgkmcnt(0)')
                if c.ADAPT == 2:
                    e('s_sub_u32 s31, s28, s100')
                    e(f's_cmp_gt_u32 s31, {c.A0 + (idx * c.AS) // 10}')
                    e('s_cselect_b32 s31, 1, 0')
                elif idx == c.X:
                    e('s_mov_b32 s31, 0')
                else:
                    e('s_sub_u32 s31, s28, s30')
                    e(f's_cmp_gt_u32 s31, {c.ATHR}')
                    e('s_cselect_b32 s31, 1, 0')
                e('s_mov_b32 s30, s28')
            a.vm_pace(c.ND)
            e('s_cmp_eq_u32 s31, 1')
            e(f's_cbranch_scc1 L_ad{idx}')
            a.vm_pace(N2)
            a.label(f'L_ad{idx}', pad=False)
        else:
            a.vm_pace(N2 if idx < c.X3 else c.N3)
        issue(idx)
        if c.STAMPS == 2 and idx in (24, 32, 40, 48, 56, 63): stamp({24: 3, 32: 7, 40: 8, 48: 9, 56: 10, 63: 1}[idx])
        bud = BUD
        while ci < len(chunks) and chunks[ci][0] <= idx and bud > 0:
            bud -= chunks[ci][1]; chunks[ci][2](); ci += 1
        if ci == len(chunks) and idx >= c.XB and not mlx_done:
            c_mlx(); mlx_done = True
        if ci == len(chunks):
            n = 0
            while pvi < 32 and 32 + pvi <= idx - (c.ND if c.ADAPT else (N2 if idx < c.X3 else c.N3)) and n < c.PVR:
                pv(pvi); pvi += 1; n += 1
    while ci < len(chunks):
        chunks[ci][2](); ci += 1
    if not mlx_done: c_mlx()
    while pvi < 32:
        pv(pvi); pvi += 1
    stamp(6)
    for r in range(8): e(f'v_mul_f32 v{48+r}, v{48+r}, v57')
    e(f'ds_write_b128 v16, v[48:51] offset:{L_ACC}')
    e(f'ds_write_b128 v16, v[52:55] offset:{L_ACC+1024}')
    e('s_waitcnt lgkmcnt(0)')
    e('s_barrier')
    e('s_cmp_lt_u32 s3, 4')
    e('s_cbranch_scc1 L_stageC')
    if c.PRIO: e(f's_setprio {c.PRIO}')
    for w in range(8): e(f'ds_read_b128 v[{64+4*w}:{67+4*w}], v18 offset:{L_ACC + w*2048}')
    for w in range(1, 8):
        e(f's_waitcnt lgkmcnt({7-w})')
        for r in range(4): e(f'v_add_f32 v{64+r}, v{64+r}, v{64+4*w+r}')
    for r in range(4): e(f'v_min_u32 v{64+r}, -2, v{64+r}')
    e('s_cmp_ge_u32 s3, 6')
    e('s_cbranch_scc1 L_stageAB')
    if not c.NOA: e(f'buffer_store_dwordx4 v[64:67], v20, {SWS}, 0 offen {c.LST}')
    stamp(7)
    e('s_cmp_lg_u32 s3, 4')
    e(f's_cbranch_scc1 {LEND}')
    e('s_barrier')
    groups = [([f'buffer_load_dwordx4 v[{72+4*j}:{75+4*j}], v27, {SWS}, 0 offen offset:{1024*j} {c.H2LD}' for j in (hh, hh + 2)], [72 + 4 * hh, 80 + 4 * hh]) for hh in range(2)]
    pipe_poll('poll2', groups, 'tag', [8, 9, 10, 11], c.PD2, c.SPIN, 'L_poll2_done', c.PS2)
    a.label('L_poll2_done', pad=False)
    stamp(10)
    e('v_add_f32 v64, v72, v76')
    e('v_add_f32 v65, v73, v77')
    e('v_add_f32 v66, v80, v84')
    e('v_add_f32 v67, v81, v85')
    for r in range(4): e(f'v_add_f32_dpp v{68+r}, v{64+r}, v{64+r} row_ror:8 row_mask:0xf bank_mask:0xf')
    for r in range(4): e(f'v_add_f32_dpp v{64+r}, v{68+r}, v{68+r} row_ror:4 row_mask:0xf bank_mask:0xf')
    for r in range(4): e(f'v_mov_b32 v{68+r}, v{64+r}')
    for r in range(4): e(f'v_permlane16_swap_b32 v{64+r}, v{68+r}')
    for r in range(4): e(f'v_add_f32 v{64+r}, v{64+r}, v{68+r}')
    for r in range(4): e(f'v_mov_b32 v{68+r}, v{64+r}')
    for r in range(4): e(f'v_permlane32_swap_b32 v{64+r}, v{68+r}')
    for r in range(4): e(f'v_add_f32 v{64+r}, v{64+r}, v{68+r}')
    e('v_cvt_pk_bf16_f32 v60, v64, v65')
    e('v_cvt_pk_bf16_f32 v61, v66, v67')
    e('v_mov_b32 v62, s74')
    e('v_mov_b32 v63, s75')
    e(f'v_mov_b32 v8, {EPOCH}')
    e('s_mov_b32 exec_lo, 0xf')
    e('s_mov_b32 exec_hi, 0')
    e(f'buffer_store_dwordx2 v[60:61], v28, {SOUT}, 0 offen')
    e('s_cmp_eq_u32 s2, 0')
    e('s_cselect_b32 exec_lo, 1, 0')
    e(f'buffer_store_dwordx2 v[62:63], v8, {SWS}, 0 offen')
    e(f's_branch {LEND}')
    a.label('L_stageAB', pad=False)
    e(f'buffer_store_dwordx4 v[64:67], v20, {SWS}, s12 offen sc1')
    exec_if_wave('eq', 6, '0xffff', '0')
    e(f'buffer_store_dwordx2 v[58:59], v21, {SWS}, s12 offen sc1')
    e(f's_branch {LEND}')
    a.label('L_stageC', pad=False)
    gml = [([f'buffer_load_dwordx4 v[80:83], v23, {SWS}, 0 offen sc1', f'buffer_load_dwordx4 v[84:87], v23, {SWS}, 0 offen offset:16 sc1'], [80, 84])]
    gdat = [([f'buffer_load_dwordx4 v[{64+4*s}:{67+4*s}], v22, {SWS}, {sT(s)} offen sc1'], [64 + 4 * s]) for s in range(4)]
    for x in gml[0][0]: e(x)
    for l, q in gdat:
        for x in l: e(x)
    for q4 in range(4): e(f'ds_read_b128 v[{32+4*q4}:{35+4*q4}], v30 offset:{L_WOF + 1024*q4}')
    e('v_mov_b32 v98, s74')
    e('v_mov_b32 v99, s75')
    e('v_mov_b32 v102, s74')
    e('v_mov_b32 v103, s75')
    e(f's_mov_b64 s[{MASKS[0]}:{MASKS[0]+1}], -1')
    e('s_waitcnt vmcnt(4)')
    poll_check(gml, 'sent', [12, 13])
    e('s_cbranch_scc0 L_pollm_done')
    masked_poll('pollm', gml, 'sent', [12, 13], c.SLP1, ('v23',), c.RA1)
    e('v_max3_f32 v8, v80, v82, v84')
    e('v_max_f32 v8, v8, v86')
    for s in range(4): e(f'v_sub_f32 v{88+s}, v{80+2*s}, v8')
    for s in range(4): e(f'v_exp_f32 v{88+s}, v{88+s}')
    e('v_mul_f32 v9, v88, v81')
    for s in range(1, 4): e(f'v_fmac_f32 v9, v{88+s}, v{81+2*s}')
    e('v_rcp_f32 v9, v9')
    for s in range(4): e(f'v_mul_f32 v{88+s}, v{88+s}, v9')
    pipe_poll('poll1p', gdat, 'sent', [10, 11, 12, 13], c.PD1, max(1, c.RA1 * c.PD1 * c.RAM), 'L_poll1_done', c.PS1, pre=True)
    masked_poll('poll1', gdat, 'sent', [12, 13, 10, 11], c.SLP1, ('v22',), 0)
    stamp(8)
    for r in range(4): e(f'v_mul_f32 v{56+r}, v88, v{64+r}')
    for s in range(1, 4):
        for r in range(4): e(f'v_fmac_f32 v{56+r}, v{88+s}, v{64+4*s+r}')
    e('v_cvt_pk_bf16_f32 v60, v56, v57')
    e('v_cvt_pk_bf16_f32 v61, v58, v59')
    e(f'ds_write_b64 v24, v[60:61] offset:{L_BX}')
    e('s_waitcnt lgkmcnt(0)')
    e('s_barrier')
    for kk in range(4): e(f'ds_read_b64 v[{104+2*kk}:{105+2*kk}], v25 offset:{L_BX + kk*512}')
    for kk in range(4):
        e(f's_waitcnt lgkmcnt({3-kk})')
        for half in range(2):
            d = 48 + 4 * half; w = wreg(kk, half)
            cc = '0' if kk == 0 else f'v[{d}:{d+3}]'
            e(f'v_mfma_f32_16x16x16_bf16 v[{d}:{d+3}], v[{w}:{w+1}], v[{104+2*kk}:{105+2*kk}], {cc}')
    for r in range(4):
        e(f'v_add_f32_dpp v{96+(r>>1)*4+(r&1)}, v{52+r}, v{48+r} row_shl:8 row_mask:0xf bank_mask:0xf bound_ctrl:0')
    e('s_mov_b32 exec_lo, 0x00ff00ff')
    e('s_mov_b32 exec_hi, 0x00ff00ff')
    e(f'buffer_store_dwordx4 v[96:99], v26, {SWS}, 0 offen {c.H2ST}')
    e(f'buffer_store_dwordx4 v[100:103], v26, {SWS}, 0 offen offset:2048 {c.H2ST}')
    stamp(9)
    if c.STAMPS:
        a.label('L_dump', pad=True)
        stamp(11)
        if c.STAMPS == 3:
            e('s_getreg_b32 s86, hwreg(HW_REG_XCC_ID)')
            e('s_getreg_b32 s87, hwreg(HW_REG_HW_ID)')
        e('s_mov_b32 exec_lo, 1')
        e('s_mov_b32 exec_hi, 0')
        e('s_waitcnt lgkmcnt(0)')
        e('s_lshl_b32 s13, s2, 10')
        e('s_lshl_b32 s14, s3, 7')
        e('s_add_u32 s13, s13, s14')
        e(f's_add_u32 s13, s13, {STAMP}')
        e('v_mov_b32 v8, s13')
        for k2 in range(6):
            for j in range(4): e(f'v_mov_b32 v{64+j}, s{76+4*k2+j}')
            e(f'buffer_store_dwordx4 v[64:67], v8, {SWS}, 0 offen offset:{16*k2}')
            e('s_nop 1')
    a.label('L_end', pad=False)
    e('s_endpgm')
    return a

HEADER = """; GQA decode (B=8,Hq=32,Hkv=8,Sk=4096,Dh=128,D=512), single launch, generated by gen.py
; @launch grid=(256,1,1) block=(512,1,1) lds=%d
.amdgcn_target "amdgcn-amd-amdhsa--gfx950"
.text
"""
def footer(nm, sg):
    return f""".section .rodata,"a"
.p2align 6
.amdhsa_kernel {nm}
  .amdhsa_next_free_vgpr 256
  .amdhsa_next_free_sgpr {sg}
  .amdhsa_accum_offset 256
  .amdhsa_group_segment_fixed_size 0
  .amdhsa_kernarg_size 64
  .amdhsa_user_sgpr_count 2
  .amdhsa_user_sgpr_kernarg_segment_ptr 1
  .amdhsa_system_sgpr_workgroup_id_x 1
.end_amdhsa_kernel
"""
if __name__ == '__main__':
    c = Cfg()
    out = sys.argv[1]
    for kv in sys.argv[2:]:
        k, v = kv.split('=')
        setattr(c, k, int(v) if v.lstrip('-').isdigit() else v)
    for k in ('NT','WNT','LST','H2ST','H2LD'):
        v = getattr(c, k)
        setattr(c, k, '' if v == 'none' else v.replace('+', ' '))
    a = gen(c)
    open(out, 'w').write(HEADER % LDS_BYTES + a.text() + footer(c.NAME, 102))
    print('instr lines', len(a.lines), 'nops', a.nops, 'lds', LDS_BYTES)
```

```python
import sys, struct, math, os
from asmlib import Asm
def f32(x): return struct.unpack('<I', struct.pack('<f', x))[0]

class Cfg:
    NI = 3
    NI0 = 16
    X = 20
    WOI = 8
    BUD = 3
    XB = 54
    ROT = 7
    RECLR = 1
    RAM = 2
    ADAPT = 0
    A0 = 250
    AS = 275
    AW = 4
    ATHR = 112
    ND = 6
    TLBW = 0
    QIND = 0
    H2ST = 'sc1'
    H2LD = 'sc1'
    MAPX = 0
    ILV = 1
    PS1 = 1
    PS2 = 0
    PRIO = 3
    DLY = 0
    PD1 = 1
    PD2 = 1
    N3 = 4
    X3 = 48
    PVR = 3
    N = 3
    N0 = 8
    N2 = 4
    MIMIC = 1
    STAMPS = 0
    NT = 'nt'
    WNT = 'nt'
    NAME = 'standalone__gqa_block_cached__decode_kernel'
    SPIN = 200000
    SLP0 = 2
    RA0 = 16
    RA1 = 16
    NOA = 0
    DBGT = 0
    LST = 'none'
    SLP1 = 2
    SLP2 = 2

QRAW = 0
PART1 = 1 << 20
MLG = (1 << 20) + (1 << 19)
INBOX2 = 2 << 20
EPOCH = (3 << 20) + 4096
STAMP = 128 << 20
BOFF = 4 << 20
L_QP = 0
L_ACC = 0
L_WO = 32768
L_QS = 49408
L_ML = 50432
L_BX = 50688
L_WOF = 52736
LDS_BYTES = 52736 + 16384

SX, SK, SV, SWQ, SWO, SOUT, SDBG, SWS = ['s[%d:%d]' % (b, b + 3) for b in (32, 36, 40, 44, 48, 52, 56, 60)]
def sT(t): return '0' if t == 0 else 's%d' % (64 + t)

def gen(c):
    a = Asm(); e = a.e
    nm = c.NAME
    LEND = 'L_dump' if c.STAMPS else 'L_end'
    def stamp(k):
        if c.STAMPS and (c.STAMPS != 4 or k in (0, 6, 11)): e(f's_memrealtime s[{76+2*k}:{77+2*k}]')
    def exec_if_wave(cmp, val, lo='-1', hi='-1'):
        e(f's_cmp_{cmp}_u32 s3, {val}')
        e(f's_cselect_b32 exec_lo, {lo}, 0')
        e(f's_cselect_b32 exec_hi, {hi}, 0')
    MASKS = [0, 24, 26, 28, 30, 56, 58, 14]
    def masked_poll(name, groups, kind, tmp, slp, tog=(), ra=0, hook=None):
        for gi in range(len(groups)): e(f's_mov_b64 s[{MASKS[gi]}:{MASKS[gi]+1}], -1')
        e(f's_mov_b32 s73, {c.SPIN}')
        a.label(f'L_{name}', pad=False)
        for gi, (loads, quads) in enumerate(groups):
            m = MASKS[gi]
            e(f's_mov_b64 exec, s[{m}:{m+1}]')
            e(f's_cbranch_execz L_{name}_s{gi}')
            for l in loads: e(l)
            a.label(f'L_{name}_s{gi}', pad=False)
        e('s_waitcnt vmcnt(0)')
        for gi, (loads, quads) in enumerate(groups):
            m = MASKS[gi]
            t = tmp[gi % len(tmp)]
            e(f's_mov_b64 exec, s[{m}:{m+1}]')
            if kind == 'tag':
                for q in quads:
                    e(f'v_xor_b32 v{q+2}, s74, v{q+2}')
                    e(f'v_xor_b32 v{q+3}, s75, v{q+3}')
                if len(quads) == 1:
                    e(f'v_or_b32 v{t}, v{quads[0]+2}, v{quads[0]+3}')
                else:
                    e(f'v_or3_b32 v{t}, v{quads[0]+2}, v{quads[0]+3}, v{quads[1]+2}')
                    e(f'v_or_b32 v{t}, v{t}, v{quads[1]+3}')
                e(f'v_cmp_ne_u32 s[{m}:{m+1}], 0, v{t}')
            else:
                regs = [q + r for q in quads for r in range(4)]
                e(f'v_max3_u32 v{t}, v{regs[0]}, v{regs[1]}, v{regs[2]}')
                k = 3
                while k < len(regs):
                    if k + 1 < len(regs):
                        e(f'v_max3_u32 v{t}, v{t}, v{regs[k]}, v{regs[k+1]}'); k += 2
                    else:
                        e(f'v_max_u32 v{t}, v{t}, v{regs[k]}'); k += 1
                e(f'v_cmp_eq_u32 s[{m}:{m+1}], -1, v{t}')
        e('s_mov_b64 exec, -1')
        m1 = MASKS[1] if len(groups) > 1 else MASKS[0]
        e(f's_or_b64 vcc, s[{MASKS[0]}:{MASKS[0]+1}], s[{m1}:{m1+1}]')
        for gi in range(2, len(groups)): e(f's_or_b64 vcc, vcc, s[{MASKS[gi]}:{MASKS[gi]+1}]')
        e(f's_cbranch_scc0 L_{name}_done')
        e(f's_sleep {slp}')
        if hook:
            e(f's_cmp_lg_u32 s73, {c.SPIN - ra}')
            e(f's_cbranch_scc1 L_{name}_nohook')
            hook()
            a.label(f'L_{name}_nohook', pad=False)
        if tog:
            e(f's_cmp_le_u32 s73, {c.SPIN - ra}')
            e(f's_cselect_b32 s13, {BOFF}, 0')
            for v in tog: e(f'v_xor_b32 {v}, s13, {v}')
        e('s_sub_u32 s73, s73, 1')
        e('s_cmp_lg_u32 s73, 0')
        e(f's_cbranch_scc1 L_{name}')
        a.label(f'L_{name}_done', pad=False)
        if hook:
            e(f's_cmp_lt_u32 s73, {c.SPIN - ra}')
            e(f's_cbranch_scc1 L_{name}_nohook2')
            hook()
            a.label(f'L_{name}_nohook2', pad=False)
    def poll_check(groups, kind, tmp):
        for gi, (loads, quads) in enumerate(groups):
            m = MASKS[gi]
            t = tmp[(2 * gi) % len(tmp)]; t2 = tmp[(2 * gi + 1) % len(tmp)]
            e(f's_mov_b64 exec, s[{m}:{m+1}]')
            if kind == 'tag':
                e(f'v_xor_b32 v{t}, s74, v{quads[0]+2}')
                e(f'v_xor_b32 v{t2}, s75, v{quads[0]+3}')
                for q in quads[1:]:
                    e(f'v_or_b32 v{t}, v{t}, v{t2}')
                    e(f'v_xor_b32 v{t2}, s74, v{q+2}')
                    e(f'v_or_b32 v{t}, v{t}, v{t2}')
                    e(f'v_xor_b32 v{t2}, s75, v{q+3}')
                e(f'v_or_b32 v{t}, v{t}, v{t2}')
                e(f'v_cmp_ne_u32 s[{m}:{m+1}], 0, v{t}')
            else:
                regs = [q + r for q in quads for r in range(4)]
                e(f'v_max3_u32 v{t}, v{regs[0]}, v{regs[1]}, v{regs[2]}')
                k = 3
                while k < len(regs):
                    if k + 1 < len(regs):
                        e(f'v_max3_u32 v{t}, v{t}, v{regs[k]}, v{regs[k+1]}'); k += 2
                    else:
                        e(f'v_max_u32 v{t}, v{t}, v{regs[k]}'); k += 1
                e(f'v_cmp_eq_u32 s[{m}:{m+1}], -1, v{t}')
        e('s_mov_b64 exec, -1')
        if len(groups) == 1:
            e(f's_or_b64 vcc, s[{MASKS[0]}:{MASKS[0]+1}], s[{MASKS[0]}:{MASKS[0]+1}]')
        else:
            e(f's_or_b64 vcc, s[{MASKS[0]}:{MASKS[0]+1}], s[{MASKS[1]}:{MASKS[1]+1}]')
        for gi in range(2, len(groups)): e(f's_or_b64 vcc, vcc, s[{MASKS[gi]}:{MASKS[gi]+1}]')
    def pipe_poll(name, groups, kind, tmp, depth, rounds, done_label, slp=0, pre=False):
        R = sum(len(l) for l, q in groups)
        for d in range(depth - (1 if pre else 0)):
            for l, q in groups:
                for x in l: e(x)
        for gi in range(len(groups)): e(f's_mov_b64 s[{MASKS[gi]}:{MASKS[gi]+1}], -1')
        e(f's_mov_b32 s73, {rounds}')
        a.label(f'L_{name}', pad=False)
        e(f's_waitcnt vmcnt({R*(depth-1)})')
        poll_check(groups, kind, tmp)
        e(f's_cbranch_scc0 {done_label}')
        if slp: e(f's_sleep {slp}')
        for gi, (loads, quads) in enumerate(groups):
            m = MASKS[gi]
            e(f's_mov_b64 exec, s[{m}:{m+1}]')
            for l in loads: e(l)
        e('s_mov_b64 exec, -1')
        e('s_sub_u32 s73, s73, 1')
        e('s_cmp_lg_u32 s73, 0')
        e(f's_cbranch_scc1 L_{name}')
        e('s_waitcnt vmcnt(0)')
    a.raw(f'.globl {nm}\n.p2align 8\n.type {nm},@function\n{nm}:')
    e('s_cmp_ge_u32 s2, 256')
    e('s_cbranch_scc1 L_end')
    e('s_load_dwordx16 s[16:31], s[0:1], 0')
    if c.ADAPT == 2: e('s_memrealtime s[100:101]')
    if c.DBGT: e('s_memrealtime s[98:99]')
    if c.STAMPS:
        for k in range(76, 100): e(f's_mov_b32 s{k}, 0')
    stamp(0)
    e('v_lshrrev_b32 v1, 6, v0')
    e('v_readfirstlane_b32 s3, v1')
    e('v_and_b32 v1, 63, v0')
    e('v_lshrrev_b32 v2, 4, v1')
    e('v_and_b32 v3, 15, v1')
    e('s_and_b32 s4, s2, 7')
    e('s_lshr_b32 s5, s2, 3')
    if c.MAPX:
        e('s_xor_b32 s4, s4, s5')
        e('s_and_b32 s4, s4, 7')
    e('s_lshr_b32 s6, s5, 2')
    e('s_and_b32 s7, s5, 3')
    e('s_lshr_b32 s8, s5, 3')
    e('s_and_b32 s9, s5, 7')
    e('s_lshl_b32 s10, s4, 2')
    e('s_add_u32 s10, s10, s8')
    for t in range(1, 9): e(f's_mov_b32 s{64+t}, {t*4096}')
    e('s_lshl_b32 s11, s8, 7')
    e('s_lshl_b32 s12, s3, 4')
    e('s_add_u32 s11, s11, s12')
    e('s_lshl_b32 s12, s11, 13')
    e('s_lshl_b32 s13, s4, 10')
    e('s_add_u32 s12, s12, s13')
    e('s_lshl_b32 s13, s9, 7')
    e('s_add_u32 s12, s12, s13')
    e('v_lshrrev_b32 v8, 3, v3')
    e('v_lshl_add_u32 v8, v2, 2, v8')
    e('v_lshlrev_b32 v8, 13, v8')
    e('v_and_b32 v9, 7, v3')
    e('v_lshl_add_u32 v8, v9, 4, v8')
    e('v_add_u32 v8, s12, v8')
    e('v_lshrrev_b32 v9, 2, v3')
    e('v_lshlrev_b32 v9, 10, v9')
    e('v_lshl_add_u32 v9, v2, 3, v9')
    e('s_lshl_b32 s13, s11, 1')
    e('v_add_u32 v9, s13, v9')
    e('s_lshl_b32 s13, s6, 5')
    e('s_lshl_b32 s14, s4, 2')
    e('s_add_u32 s13, s13, s14')
    if not c.ILV: e('s_add_u32 s13, s13, s7')
    e('s_lshl_b32 s13, s13, 18')
    if c.ILV:
        e(f's_lshl_b32 s14, s7, {15 if c.ILV == 1 else 12}')
        e('s_add_u32 s13, s13, s14')
    e(f's_lshl_b32 s14, s3, {14 if c.ILV == 2 else 12}')
    e('s_add_u32 s13, s13, s14')
    e('v_and_b32 v4, 3, v3')
    e('v_bfe_u32 v5, v3, 2, 1')
    e('v_lshl_add_u32 v4, v4, 2, v5')
    e('v_lshlrev_b32 v4, 8, v4')
    e('v_lshl_add_u32 v4, v2, 4, v4')
    e('v_lshrrev_b32 v5, 3, v3')
    e('v_lshl_add_u32 v4, v5, 6, v4')
    e('v_add_u32 v4, s13, v4')
    e('v_lshlrev_b32 v5, 4, v1')
    e('v_add_u32 v5, s13, v5')
    e('s_waitcnt lgkmcnt(0)')
    def srd(base, p, size):
        e(f's_mov_b32 s{base}, s{p}')
        e(f's_and_b32 s{base+1}, s{p+1}, 0xffff')
        e(f's_mov_b32 s{base+2}, {size}')
        e(f's_mov_b32 s{base+3}, 0x20000')
    srd(44, 22, 4 << 20); srd(32, 16, 8192)
    if c.DBGT: srd(92, 28, 256)
    e(f'buffer_load_dwordx4 v[64:67], v8, {SWQ}, 0 offen {c.WNT}')
    e(f'buffer_load_dwordx4 v[68:71], v8, {SWQ}, {sT(4)} offen {c.WNT}')
    e(f'buffer_load_dwordx2 v[72:73], v9, {SX}, 0 offen')
    e(f'buffer_load_dwordx2 v[74:75], v9, {SX}, {sT(1)} offen')
    mk_wq = a.vm_mark()
    srd(36, 18, 64 << 20)
    e(f's_add_u32 s14, s30, {EPOCH}')
    e('s_addc_u32 s15, s31, 0')
    e('s_load_dwordx2 s[74:75], s[14:15], 0')
    srd(48, 24, 4 << 20); srd(40, 20, 64 << 20); srd(52, 26, 8192); srd(60, 30, 256 << 20)
    if c.ROT == 0:
        for j in range(1, 8): e(f's_mov_b32 s{16+j}, {j*(131072 if c.ILV else 32768)}')
    else:
        if c.ROT == 1: e('s_mov_b32 s13, s5')
        elif c.ROT == 2: e('s_add_u32 s13, s5, s4')
        elif c.ROT == 3: e('s_mov_b32 s13, s4')
        elif c.ROT == 4: e('s_mov_b32 s13, s6')
        elif c.ROT == 5:
            e('s_lshl_b32 s13, s7, 1'); e('s_add_u32 s13, s13, s6'); e('s_add_u32 s13, s13, s4')
        elif c.ROT == 6:
            e('s_lshl_b32 s13, s7, 1'); e('s_add_u32 s13, s13, s6')
        elif c.ROT == 7:
            e('s_mul_i32 s13, s6, 3')
        elif c.ROT == 8:
            e('s_lshl_b32 s13, s7, 1')
        elif c.ROT == 9:
            e('s_add_u32 s13, s7, s6')
        elif c.ROT == 10:
            e('s_xor_b32 s13, s6, s4')
        elif c.ROT == 11:
            e('s_lshl_b32 s13, s4, 2'); e('s_add_u32 s13, s13, s6')
        elif c.ROT == 12:
            e('s_sub_u32 s13, 8, s6')
        elif c.ROT == 13:
            e('s_lshr_b32 s13, s6, 1'); e('s_lshl_b32 s13, s13, 1')
        for j in range(8):
            e(f's_add_u32 s14, s13, {j}')
            e('s_and_b32 s14, s14, 7')
            e(f's_lshl_b32 s{16+j}, s14, {17 if c.ILV else 15}')
    def sJ(j): return '0' if (j == 0 and c.ROT == 0) else 's%d' % (16 + j)
    marks = {}
    issued = [0]
    def swait(idx):
        n = issued[0] - (idx + 1)
        assert n >= 0
        e(f's_waitcnt vmcnt({min(n,63)})')
    def kreg(t, kk): return 128 + 16 * t + 4 * kk
    def vreg(t, rr): return (64 + 16 * t + 4 * rr) if t < 4 else (128 + 16 * (t - 4) + 4 * rr)
    def issue(idx):
        if idx < 32:
            t, kk = idx // 4, idx % 4; r = kreg(t, kk)
            e(f'buffer_load_dwordx4 v[{r}:{r+3}], v4, {SK}, {sJ(t)} offen offset:{(kk>>1)*512 + (kk&1)*128} {c.NT}')
        else:
            t, rr = (idx - 32) // 4, idx % 4; r = vreg(t, rr)
            e(f'buffer_load_dwordx4 v[{r}:{r+3}], v5, {SV}, {sJ(t)} offen offset:{rr*1024} {c.NT}')
        marks[idx] = a.vm_mark()
        issued[0] = idx + 1
    for idx in range(c.NI): issue(idx)
    e('v_and_b32 v14, 1, v1')
    e('v_lshlrev_b32 v14, 4, v14')
    e('v_mov_b32 v15, 0xffff')
    e('v_lshlrev_b32 v15, v14, v15')
    e('v_and_b32 v14, 3, v1')
    e('v_cmp_gt_u32 vcc, 2, v14')
    e('v_cndmask_b32 v6, 0, v15, vcc')
    e('v_xor_b32 v7, v15, v6')
    e('s_and_b32 s15, s3, 3')
    e('s_lshl_b32 s13, s10, 7')
    e('s_lshl_b32 s14, s15, 5')
    e('s_add_u32 s13, s13, s14')
    e('s_lshl_b32 s13, s13, 10')
    e('s_lshl_b32 s14, s9, 7')
    e('s_add_u32 s13, s13, s14')
    e('v_lshrrev_b32 v10, 3, v1')
    e('v_and_b32 v11, 7, v1')
    e('v_lshlrev_b32 v12, 10, v10')
    e('v_lshl_add_u32 v12, v11, 4, v12')
    e('v_add_u32 v12, s13, v12')
    e('s_mul_i32 s13, s15, 4128')
    e(f's_add_u32 s13, s13, {L_WO}')
    e('v_lshlrev_b32 v13, 4, v1')
    e('v_add_u32 v13, s13, v13')
    e('v_mov_b32 v14, 0x0c0c0c0c')
    e('s_mov_b32 s13, 0x01000100')
    e('s_mov_b32 s14, 0x03020302')
    e('v_bfi_b32 v84, v6, s13, v14')
    e('v_bfi_b32 v85, v7, s13, v14')
    e('v_bfi_b32 v86, v6, s14, v14')
    e('v_bfi_b32 v87, v7, s14, v14')
    e('s_mov_b32 vcc_lo, 0')
    e('s_mov_b32 vcc_hi, -1')
    e('s_lshl_b32 s13, s3, 12')
    e('v_lshlrev_b32 v14, 4, v1')
    e('v_add_u32 v14, s13, v14')
    def addr_p1(vd, vt, alpha_sgpr):
        e(f'v_lshrrev_b32 {vt}, 5, v1')
        e(f'v_lshlrev_b32 {vd}, 14, {vt}')
        e(f'v_bfe_u32 {vt}, v1, 3, 2')
        e(f'v_lshl_add_u32 {vd}, {vt}, 10, {vd}')
        e(f'v_and_b32 {vt}, 7, v1')
        e(f'v_lshl_add_u32 {vd}, {vt}, 4, {vd}')
        e('s_lshl_b32 s13, s4, 16')
        e('s_lshl_b32 s14, s7, 12')
        e('s_add_u32 s13, s13, s14')
        e('s_lshl_b32 s14, s6, 7')
        e('s_add_u32 s13, s13, s14')
        e(f's_add_u32 s13, s13, {PART1}')
        if alpha_sgpr:
            e(f's_lshl_b32 s14, {alpha_sgpr}, 15')
            e('s_add_u32 s13, s13, s14')
        e(f'v_add_u32 {vd}, s13, {vd}')
    def addr_ml(vm):
        e(f'v_lshlrev_b32 {vm}, 8, v3')
        e('s_lshl_b32 s13, s4, 12')
        e('s_lshl_b32 s14, s6, 5')
        e('s_add_u32 s13, s13, s14')
        e('s_lshl_b32 s14, s7, 3')
        e('s_add_u32 s13, s13, s14')
        e(f's_add_u32 s13, s13, {MLG}')
        e(f'v_add_u32 {vm}, s13, {vm}')
    def addr_inbox(vd):
        e('s_lshl_b32 s13, s2, 12')
        e(f's_add_u32 s13, s13, {INBOX2}')
        e(f'v_lshlrev_b32 {vd}, 4, v1')
        e(f'v_add_u32 {vd}, s13, {vd}')
    a.vm_wait(mk_wq)
    def dq(bg, aa, half): return 96 + ((bg * 2 + aa) * 2 + half) * 4
    k = 0
    for t in range(2):
        for bg in range(2):
            for aa in range(2):
                bt = 88 + 2 * (k % 4); k += 1
                xw = 72 + 2 * bg + t
                e(f'v_perm_b32 v{bt}, v{xw}, v{xw}, v{84+2*aa}')
                e(f'v_perm_b32 v{bt+1}, v{xw}, v{xw}, v{85+2*aa}')
                for half in range(2):
                    d = dq(bg, aa, half); A0 = 64 + 4 * t + 2 * half
                    cc = '0' if t == 0 else f'v[{d}:{d+3}]'
                    e(f'v_mfma_f32_16x16x16_bf16 v[{d}:{d+3}], v[{A0}:{A0+1}], v[{bt}:{bt+1}], {cc}')
    saved_vq = list(a.vq)
    e('s_cmp_lg_u32 s3, 0')
    e('s_cbranch_scc1 L_merge')
    addr_p1('v48', 'v50', None)
    addr_ml('v49')
    for r in range(4): e(f'v_mov_b32 v{52+r}, -1')
    e(f'v_add_u32 v50, {BOFF}, v48')
    e(f'v_add_u32 v51, {BOFF}, v49')
    for va in ('v48', 'v50'):
        e(f'buffer_store_dwordx4 v[52:55], {va}, {SWS}, 0 offen sc1')
        e(f'buffer_store_dwordx4 v[52:55], {va}, {SWS}, {sT(8)} offen sc1')
    e('s_mov_b32 exec_lo, 0xffff')
    e('s_mov_b32 exec_hi, 0')
    for va in ('v49', 'v51'):
        e(f'buffer_store_dwordx2 v[52:53], {va}, {SWS}, 0 offen sc1')
    mk_clr = a.vm_mark()
    e('s_mov_b64 exec, -1')
    for idx in range(c.NI, c.NI0): issue(idx)
    a.label('L_merge', pad=True)
    for bg in range(2):
        for half in range(2):
            d0 = dq(bg, 0, half); d1 = dq(bg, 1, half)
            for r in range(4): e(f'v_cndmask_b32 v{d0+r}, v{d0+r}, v{d1+r}, vcc')
            e(f'ds_write_b128 v14, v[{d0}:{d0+3}] offset:{L_QP + (bg*2+half)*1024}')
    e('s_waitcnt lgkmcnt(0)')
    e('s_barrier')
    stamp(1)
    e('s_mov_b32 s12, %d' % BOFF)
    e('s_add_u32 s74, s74, 1')
    e('s_add_u32 s75, s75, 0x9E3779B9')
    e('s_cmp_lg_u32 s3, 0')
    e('s_cbranch_scc1 L_others')
    e('v_lshlrev_b32 v14, 4, v1')
    for pr in range(2):
        for half in range(2):
            for w in range(8):
                r = 64 + (half * 8 + w) * 4
                e(f'ds_read_b128 v[{r}:{r+3}], v14 offset:{L_QP + w*4096 + (pr*2+half)*1024}')
        if pr == 0:
            e('s_lshl_b32 s13, s4, 17')
            e('s_lshl_b32 s14, s5, 9')
            e('s_add_u32 s13, s13, s14')
            if QRAW: e(f's_add_u32 s13, s13, {QRAW}')
            e('v_bfe_u32 v10, v1, 2, 2')
            e('v_lshlrev_b32 v10, 14, v10')
            e('v_lshl_add_u32 v10, v2, 6, v10')
            e('v_and_b32 v15, 3, v1')
            e('v_lshl_add_u32 v10, v15, 4, v10')
            e('v_add_u32 v56, s13, v10')
            e('v_add_u32 v57, 0x10000, v56')
        e('s_waitcnt lgkmcnt(0)')
        for half in range(2):
            dst = 32 + half * 4
            b0 = 64 + half * 32
            for r in range(4):
                e(f'v_add_f32 v{dst+r}, v{b0+r}, v{b0+4+r}')
            for w in range(2, 8):
                for r in range(4):
                    e(f'v_add_f32 v{dst+r}, v{dst+r}, v{b0+4*w+r}')
        for r in range(4): e(f'v_permlane32_swap_b32 v{32+r}, v{36+r}')
        ga = 40 + pr * 8
        e(f'v_add_f32 v{ga}, v32, v36')
        e(f'v_add_f32 v{ga+1}, v33, v37')
        e(f'v_mov_b32 v{ga+2}, s74')
        e(f'v_mov_b32 v{ga+3}, s75')
        e(f'v_add_f32 v{ga+4}, v34, v38')
        e(f'v_add_f32 v{ga+5}, v35, v39')
        e(f'v_mov_b32 v{ga+6}, s74')
        e(f'v_mov_b32 v{ga+7}, s75')
        va = 'v56' if pr == 0 else 'v57'
        if pr == 0: a.vm_wait(mk_clr)
        if not c.NOA:
            e(f'buffer_store_dwordx4 v[{ga}:{ga+3}], {va}, {SWS}, 0 offen {c.LST}')
            e(f'buffer_store_dwordx4 v[{ga+4}:{ga+7}], {va}, {SWS}, 0 offen offset:256 {c.LST}')
    e('s_lshl_b32 s13, s4, 3')
    e('s_add_u32 s13, s13, s6')
    e('s_lshl_b32 s13, s13, 14')
    if QRAW: e(f's_add_u32 s13, s13, {QRAW}')
    e('v_lshlrev_b32 v14, 9, v2')
    e('v_lshl_add_u32 v14, v3, 4, v14')
    e('v_add_u32 v14, s13, v14')
    e('v_lshlrev_b32 v15, 7, v2')
    e('v_bfe_u32 v10, v1, 2, 1')
    e('v_lshl_add_u32 v15, v10, 6, v15')
    e('v_bfe_u32 v10, v1, 3, 1')
    e('v_lshl_add_u32 v15, v10, 3, v15')
    e('v_and_b32 v10, 3, v1')
    e('v_lshl_add_u32 v15, v10, 1, v15')
    groups = []
    for n in range(8):
        lds = []; qs = []
        for ab in range(2):
            r = 64 + 8 * n + 4 * ab
            lds.append(f'buffer_load_dwordx4 v[{r}:{r+3}], v14, {SWS}, {sT(n//2)} offen offset:{(n%2)*2048 + ab*256} sc1')
            qs.append(r)
        groups.append((lds, qs))
    if c.QIND:
        e('v_and_b32 v10, 31, v1')
        e('v_lshlrev_b32 v10, 9, v10')
        e('v_add_u32 v10, s13, v10')
        gi = [([f'buffer_load_dwordx4 v[64:67], v10, {SWS}, 0 offen offset:496 sc1'], [64])]
        pipe_poll('polli', gi, 'tag', [11, 58], 1, c.QIND, 'L_polli_done', c.SLP0)
        a.label('L_polli_done', pad=False)
    def q_pub_b():
        for pr in range(2):
            ga = 40 + pr * 8; va = 'v56' if pr == 0 else 'v57'
            e(f'buffer_store_dwordx4 v[{ga}:{ga+3}], {va}, {SWS}, s12 offen sc1')
            e(f'buffer_store_dwordx4 v[{ga+4}:{ga+7}], {va}, {SWS}, s12 offen offset:256 sc1')
    masked_poll('poll0', groups, 'tag', [10, 11], c.SLP0, ('v14',), c.RA0, q_pub_b)
    stamp(3)
    for uu in range(2):
        d = 32 + 4 * uu
        def qv(n, rr): return 64 + 8 * n + (rr >> 1) * 4 + (rr & 1)
        for r in range(4): e(f'v_add_f32 v{d+r}, v{qv(uu,r)}, v{qv(2+uu,r)}')
        for r in range(4): e(f'v_add_f32 v{d+r}, v{d+r}, v{qv(4+uu,r)}')
        for r in range(4): e(f'v_add_f32 v{d+r}, v{d+r}, v{qv(6+uu,r)}')
        e(f'v_cvt_pk_bf16_f32 v{60+2*uu}, v{d}, v{d+1}')
        e(f'v_cvt_pk_bf16_f32 v{61+2*uu}, v{d+2}, v{d+3}')
        o = L_QS + uu * 512
        e(f'ds_write_b16 v15, v{60+2*uu} offset:{o}')
        e(f'ds_write_b16_d16_hi v15, v{60+2*uu} offset:{o+16}')
        e(f'ds_write_b16 v15, v{61+2*uu} offset:{o+32}')
        e(f'ds_write_b16_d16_hi v15, v{61+2*uu} offset:{o+48}')
    for idx in range(c.NI0, c.X):
        if idx - c.NI0 >= c.N0: a.vm_pace(c.N0)
        issue(idx)
    stamp(4)
    e('s_waitcnt lgkmcnt(0)')
    e('s_barrier')
    e('s_branch L_main')
    a.vq = saved_vq
    a.label('L_others', pad=False)
    if c.TLBW:
        e(f'v_lshlrev_b32 v48, {17 if c.ILV else 15}, v1')
        e('v_lshlrev_b32 v49, 4, v1')
        e('v_sub_u32 v49, v5, v49')
        e('v_add_u32 v48, v48, v49')
        exec_if_wave('eq', 1, '0xff', '0')
        e(f'buffer_load_dword v50, v48, {SV}, 0 offen {c.NT}')
        e(f'buffer_load_dword v51, v48, {SK}, 0 offen {c.NT}')
        e('s_mov_b64 exec, -1')
    for idx in range(c.NI, c.X):
        a.vm_pace(c.N)
        issue(idx)
        if idx == c.WOI:
            exec_if_wave('ge', 4)
            for t in range(4):
                e(f'buffer_load_dwordx4 v[{32+4*t}:{35+4*t}], v12, {SWO}, {sT(2*t)} offen {c.WNT}')
            mk_wo = a.vm_mark()
            e('s_mov_b64 exec, -1')
    stamp(4)
    a.vm_wait(mk_wo)
    exec_if_wave('ge', 4)
    for t in range(4): e(f'ds_write_b128 v13, v[{32+4*t}:{35+4*t}] offset:{1024*t}')
    e('s_mov_b64 exec, -1')
    e('s_waitcnt lgkmcnt(0)')
    e('s_barrier')
    a.label('L_main', pad=False)
    stamp(2)
    scale = 128 ** -0.5; log2e = math.log2(math.e)
    cexp = log2e if c.MIMIC else scale * log2e
    def c_qfrag():
        e('v_lshrrev_b32 v14, 2, v3')
        e('v_lshlrev_b32 v14, 8, v14')
        e('v_lshl_add_u32 v14, v2, 4, v14')
        e('v_and_b32 v15, 1, v1')
        e('v_lshl_add_u32 v14, v15, 6, v14')
        for hf in range(2):
            e(f'ds_read_b128 v[{16+4*hf}:{19+4*hf}], v14 offset:{L_QS + hf*128}')
        e(f's_mov_b32 s24, {f32(scale):#x}')
        e('s_mov_b32 s25, 0xffff0000')
        e(f's_mov_b32 s26, {f32(cexp):#x}')
        e('s_waitcnt lgkmcnt(0)')
    def qk(t):
        swait(4 * t + 3)
        s = 32 + 4 * t
        y = 24 + 4 * (t % 2)
        for sub in range(2):
            d = s if sub == 0 else y
            for hf in range(2):
                r = kreg(t, sub * 2 + hf)
                cc = '0' if hf == 0 else f'v[{d}:{d+3}]'
                e(f'v_mfma_f32_16x16x32_bf16 v[{d}:{d+3}], v[{r}:{r+3}], v[{16+4*hf}:{19+4*hf}], {cc}')
    def qkfix(t):
        s = 32 + 4 * t
        y = 24 + 4 * (t % 2)
        for r in range(4): e(f'v_permlane32_swap_b32 v{s+r}, v{y+r}')
        for r in range(4): e(f'v_mov_b32_dpp v{s+r}, v{s+r} quad_perm:[0,0,2,2] row_mask:0xf bank_mask:0xf')
        for r in range(4): e(f'v_add_f32_dpp v{s+r}, v{y+r}, v{s+r} quad_perm:[1,1,3,3] row_mask:0xf bank_mask:0xf')
        if c.MIMIC:
            for step in range(8):
                for p in range(2):
                    x0 = s + 2 * p; x1 = x0 + 1; tt = 10 + p
                    e([f'v_cvt_pk_bf16_f32 v{tt}, v{x0}, v{x1}',
                       f'v_lshlrev_b32 v{x0}, 16, v{tt}',
                       f'v_and_b32 v{x1}, s25, v{tt}',
                       f'v_mul_f32 v{x0}, s24, v{x0}',
                       f'v_mul_f32 v{x1}, s24, v{x1}',
                       f'v_cvt_pk_bf16_f32 v{tt}, v{x0}, v{x1}',
                       f'v_lshlrev_b32 v{x0}, 16, v{tt}',
                       f'v_and_b32 v{x1}, s25, v{tt}'][step])
        if t == 0:
            e(f'v_max3_f32 v8, v{s}, v{s+1}, v{s+2}')
            e(f'v_max_f32 v8, v8, v{s+3}')
        else:
            e(f'v_max3_f32 v8, v8, v{s}, v{s+1}')
            e(f'v_max3_f32 v8, v8, v{s+2}, v{s+3}')
    def c_max():
        e('v_mov_b32 v9, v8')
        e('v_permlane32_swap_b32 v8, v9')
        e('v_max_f32 v8, v8, v9')
        e('v_mov_b32 v9, v8')
        e('v_permlane16_swap_b32 v8, v9')
        e('v_max_f32 v8, v8, v9')
        e('v_mul_f32 v8, s26, v8')
        e('v_sub_f32 v10, 0, v8')
        e('v_mov_b32 v9, 0')
        e('v_mov_b32 v11, 0')
    def c_exp(t):
        for r in range(4): e(f'v_fma_f32 v{32+4*t+r}, v{32+4*t+r}, s26, v10')
        for r in range(4): e(f'v_exp_f32 v{32+4*t+r}, v{32+4*t+r}')
        for r in range(4):
            idx = 4 * t + r
            s = 32 + idx; pb = 192 + 2 * idx
            la = 9 if idx % 2 == 0 else 11
            e(f'v_add_f32 v{la}, v{la}, v{s}')
            e(f'v_cvt_pk_bf16_f32 v{s}, v{s}, v{s}')
            e(f'v_and_b32 v{pb}, v6, v{s}')
            e(f'v_and_b32 v{pb+1}, v7, v{s}')
    def c_lred():
        e('v_add_f32 v9, v9, v11')
        e('v_mov_b32 v11, v9')
        e('v_permlane32_swap_b32 v9, v11')
        e('v_add_f32 v9, v9, v11')
        e('v_mov_b32 v11, v9')
        e('v_permlane16_swap_b32 v9, v11')
        e('v_add_f32 v9, v9, v11')
        stamp(5)
        e('s_lshl_b32 s13, s3, 11')
        e('v_lshlrev_b32 v29, 4, v1')
        e('v_add_u32 v16, s13, v29')
        e('s_lshl_b32 s13, s3, 3')
        e('v_add_u32 v17, s13, v29')
        e('s_mov_b32 exec_lo, 0x1111')
        e('s_mov_b32 exec_hi, 0')
        e(f'ds_write_b64 v17, v[8:9] offset:{L_ML}')
        e('s_mov_b64 exec, -1')
    def c_prep():
        addr_ml('v21')
        e('v_bfe_u32 v19, v1, 2, 2')
        e('v_lshlrev_b32 v19, 6, v19')
        e('s_cmp_lt_u32 s3, 4')
        e('s_cbranch_scc1 L_prep03')
        e('v_mul_u32_u24 v10, 4128, v2')
        e('v_lshl_add_u32 v10, v3, 1, v10')
        e('s_and_b32 s14, s3, 3')
        e('s_lshl_b32 s13, s14, 5')
        e('v_add_u32 v10, s13, v10')
        for kk in range(4):
            for half in range(2):
                for r in range(4):
                    e(f'ds_read_u16 v{32 + (kk*2+half)*4 + r}, v10 offset:{L_WO + (8*r + 4*half + kk)*128}')
        e('s_lshl_b32 s13, s14, 12')
        e('v_add_u32 v11, s13, v29')
        e('s_and_b32 s11, s3, 1')
        e('v_and_b32 v18, 1, v1')
        e('v_lshlrev_b32 v18, 10, v18')
        e('v_bfe_u32 v10, v1, 1, 2')
        e('v_lshl_add_u32 v18, v10, 8, v18')
        e('v_bfe_u32 v10, v1, 3, 2')
        e('v_lshl_add_u32 v18, v10, 4, v18')
        e('v_lshrrev_b32 v10, 5, v1')
        e('s_lshl_b32 s13, s11, 1')
        e('v_add_u32 v10, s13, v10')
        e('v_lshl_add_u32 v18, v10, 6, v18')
        addr_p1('v20', 'v10', 's11')
        addr_inbox('v27')
        e('s_lshl_b32 s13, s2, 5')
        e('v_lshlrev_b32 v28, 3, v1')
        e('v_add_u32 v28, s13, v28')
        e('s_waitcnt lgkmcnt(0)')
        for n in range(16): e(f'v_lshl_or_b32 v{32+n}, v{33+2*n}, 16, v{32+2*n}')
        for q4 in range(4): e(f'ds_write_b128 v11, v[{32+4*q4}:{35+4*q4}] offset:{L_WOF + 1024*q4}')
        e('s_branch L_pv')
        a.label('L_prep03', pad=False)
        e('v_and_b32 v10, 7, v1')
        e('v_lshlrev_b32 v22, 7, v10')
        e('v_lshl_add_u32 v22, v2, 5, v22')
        e('v_bfe_u32 v11, v1, 3, 1')
        e('v_lshl_add_u32 v22, v11, 4, v22')
        e('s_lshl_b32 s13, s10, 14')
        e('s_lshl_b32 s14, s3, 10')
        e('s_add_u32 s13, s13, s14')
        e(f's_add_u32 s13, s13, {PART1}')
        e('v_add_u32 v22, s13, v22')
        e('s_lshl_b32 s13, s10, 10')
        e('s_lshl_b32 s14, s3, 8')
        e('s_add_u32 s13, s13, s14')
        e(f's_add_u32 s13, s13, {MLG}')
        e('v_lshlrev_b32 v23, 5, v10')
        e('v_add_u32 v23, s13, v23')
        e('v_lshlrev_b32 v25, 3, v1')
        e('s_lshl_b32 s13, s3, 9')
        e('v_add_u32 v24, s13, v25')
        e('v_lshlrev_b32 v26, 17, v10')
        e('v_lshl_add_u32 v26, v2, 4, v26')
        e('s_lshl_b32 s13, s9, 2')
        e('s_add_u32 s13, s13, s3')
        e('s_lshl_b32 s13, s13, 12')
        e('s_lshl_b32 s14, s10, 6')
        e('s_add_u32 s13, s13, s14')
        e(f's_add_u32 s13, s13, {INBOX2}')
        e('v_add_u32 v26, s13, v26')
        e('s_lshl_b32 s13, s3, 12')
        e('v_add_u32 v30, s13, v29')
        a.label('L_pv', pad=False)
    def c_mlx():
        e('s_waitcnt lgkmcnt(0)')
        e('s_barrier')
        for j in range(4): e(f'ds_read_b128 v[{32+4*j}:{35+4*j}], v19 offset:{L_ML + 16*j}')
        e('s_waitcnt lgkmcnt(0)')
        e('v_max3_f32 v58, v32, v34, v36')
        e('v_max3_f32 v59, v38, v40, v42')
        e('v_max3_f32 v58, v58, v44, v46')
        e('v_max_f32 v58, v58, v59')
        e('v_sub_f32 v57, v8, v58')
        for w in range(8): e(f'v_sub_f32 v{32+2*w}, v{32+2*w}, v58')
        e('v_exp_f32 v57, v57')
        for w in range(8): e(f'v_exp_f32 v{32+2*w}, v{32+2*w}')
        e('v_mul_f32 v59, v32, v33')
        for w in range(1, 8): e(f'v_fmac_f32 v59, v{32+2*w}, v{33+2*w}')
        e('v_min_u32 v58, -2, v58')
        e('v_min_u32 v59, -2, v59')
        exec_if_wave('eq', 0, '0xffff', '0')
        if not c.NOA: e(f'buffer_store_dwordx2 v[58:59], v21, {SWS}, 0 offen {c.LST}')
        e('s_mov_b64 exec, -1')
        if c.RECLR:
            for r in range(4): e(f'v_mov_b32 v{60+r}, -1')
            e('s_lshr_b32 s13, s3, 1')
            e('s_cmp_eq_u32 s13, 2')
            e('s_cbranch_scc0 L_noreclr')
            e(f'buffer_store_dwordx4 v[60:63], v20, {SWS}, 0 offen {c.LST}')
            a.label('L_noreclr', pad=False)
    def wreg(kk, half): return 32 + (kk * 2 + half) * 2
    def pv(i):
        t, rr = i // 4, i % 4
        swait(32 + i)
        vr = vreg(t, rr); pb = 192 + 2 * i
        for half in range(2):
            d = 48 + 4 * half
            cc = '0' if i == 0 else f'v[{d}:{d+3}]'
            e(f'v_mfma_f32_16x16x16_bf16 v[{d}:{d+3}], v[{vr+2*half}:{vr+2*half+1}], v[{pb}:{pb+1}], {cc}')
    N2 = c.N2
    chunks = [(c.X, 1, c_qfrag)]
    for t in range(8):
        chunks.append((4 * t + 3 + (c.ND if c.ADAPT else N2), 1, (lambda t=t: qk(t))))
        if t: chunks.append((0, 2, (lambda t=t: qkfix(t - 1))))
    chunks.append((0, 3, lambda: qkfix(7)))
    chunks.append((0, 1, c_max))
    for t in range(8): chunks.append((0, 2, (lambda t=t: c_exp(t))))
    chunks.append((0, 1, c_lred))
    chunks.append((0, 4, c_prep))
    BUD = c.BUD
    ci = 0; pvi = 0
    mlx_done = False
    for idx in range(c.X, 64):
        if idx >= 48:
            need_t = (idx - 48) // 4
            while ci < len(chunks) and ci <= 2 * need_t + 1:
                chunks[ci][2](); ci += 1
        if c.ADAPT:
            if (idx - c.X) % c.AW == 0:
                e('s_memrealtime s[28:29]')
                e('s_waitcnt lgkmcnt(0)')
                if c.ADAPT == 2:
                    e('s_sub_u32 s31, s28, s100')
                    e(f's_cmp_gt_u32 s31, {c.A0 + (idx * c.AS) // 10}')
                    e('s_cselect_b32 s31, 1, 0')
                elif idx == c.X:
                    e('s_mov_b32 s31, 0')
                else:
                    e('s_sub_u32 s31, s28, s30')
                    e(f's_cmp_gt_u32 s31, {c.ATHR}')
                    e('s_cselect_b32 s31, 1, 0')
                e('s_mov_b32 s30, s28')
            a.vm_pace(c.ND)
            e('s_cmp_eq_u32 s31, 1')
            e(f's_cbranch_scc1 L_ad{idx}')
            a.vm_pace(N2)
            a.label(f'L_ad{idx}', pad=False)
        else:
            a.vm_pace(N2 if idx < c.X3 else c.N3)
        issue(idx)
        if c.STAMPS == 2 and idx in (24, 32, 40, 48, 56, 63): stamp({24: 3, 32: 7, 40: 8, 48: 9, 56: 10, 63: 1}[idx])
        bud = BUD
        while ci < len(chunks) and chunks[ci][0] <= idx and bud > 0:
            bud -= chunks[ci][1]; chunks[ci][2](); ci += 1
        if ci == len(chunks) and idx >= c.XB and not mlx_done:
            c_mlx(); mlx_done = True
        if ci == len(chunks):
            n = 0
            while pvi < 32 and 32 + pvi <= idx - (c.ND if c.ADAPT else (N2 if idx < c.X3 else c.N3)) and n < c.PVR:
                pv(pvi); pvi += 1; n += 1
    while ci < len(chunks):
        chunks[ci][2](); ci += 1
    if not mlx_done: c_mlx()
    while pvi < 32:
        pv(pvi); pvi += 1
    stamp(6)
    for r in range(8): e(f'v_mul_f32 v{48+r}, v{48+r}, v57')
    e(f'ds_write_b128 v16, v[48:51] offset:{L_ACC}')
    e(f'ds_write_b128 v16, v[52:55] offset:{L_ACC+1024}')
    e('s_waitcnt lgkmcnt(0)')
    e('s_barrier')
    e('s_cmp_lt_u32 s3, 4')
    e('s_cbranch_scc1 L_stageC')
    if c.PRIO: e(f's_setprio {c.PRIO}')
    for w in range(8): e(f'ds_read_b128 v[{64+4*w}:{67+4*w}], v18 offset:{L_ACC + w*2048}')
    for w in range(1, 8):
        e(f's_waitcnt lgkmcnt({7-w})')
        for r in range(4): e(f'v_add_f32 v{64+r}, v{64+r}, v{64+4*w+r}')
    for r in range(4): e(f'v_min_u32 v{64+r}, -2, v{64+r}')
    e('s_cmp_ge_u32 s3, 6')
    e('s_cbranch_scc1 L_stageAB')
    if not c.NOA: e(f'buffer_store_dwordx4 v[64:67], v20, {SWS}, 0 offen {c.LST}')
    stamp(7)
    e('s_cmp_lg_u32 s3, 4')
    e(f's_cbranch_scc1 {LEND}')
    e('s_barrier')
    groups = [([f'buffer_load_dwordx4 v[{72+4*j}:{75+4*j}], v27, {SWS}, 0 offen offset:{1024*j} {c.H2LD}' for j in (hh, hh + 2)], [72 + 4 * hh, 80 + 4 * hh]) for hh in range(2)]
    pipe_poll('poll2', groups, 'tag', [8, 9, 10, 11], c.PD2, c.SPIN, 'L_poll2_done', c.PS2)
    a.label('L_poll2_done', pad=False)
    stamp(10)
    e('v_add_f32 v64, v72, v76')
    e('v_add_f32 v65, v73, v77')
    e('v_add_f32 v66, v80, v84')
    e('v_add_f32 v67, v81, v85')
    for r in range(4): e(f'v_add_f32_dpp v{68+r}, v{64+r}, v{64+r} row_ror:8 row_mask:0xf bank_mask:0xf')
    for r in range(4): e(f'v_add_f32_dpp v{64+r}, v{68+r}, v{68+r} row_ror:4 row_mask:0xf bank_mask:0xf')
    for r in range(4): e(f'v_mov_b32 v{68+r}, v{64+r}')
    for r in range(4): e(f'v_permlane16_swap_b32 v{64+r}, v{68+r}')
    for r in range(4): e(f'v_add_f32 v{64+r}, v{64+r}, v{68+r}')
    for r in range(4): e(f'v_mov_b32 v{68+r}, v{64+r}')
    for r in range(4): e(f'v_permlane32_swap_b32 v{64+r}, v{68+r}')
    for r in range(4): e(f'v_add_f32 v{64+r}, v{64+r}, v{68+r}')
    e('v_cvt_pk_bf16_f32 v60, v64, v65')
    e('v_cvt_pk_bf16_f32 v61, v66, v67')
    e('v_mov_b32 v62, s74')
    e('v_mov_b32 v63, s75')
    e(f'v_mov_b32 v8, {EPOCH}')
    e('s_mov_b32 exec_lo, 0xf')
    e('s_mov_b32 exec_hi, 0')
    e(f'buffer_store_dwordx2 v[60:61], v28, {SOUT}, 0 offen')
    e('s_cmp_eq_u32 s2, 0')
    e('s_cselect_b32 exec_lo, 1, 0')
    e(f'buffer_store_dwordx2 v[62:63], v8, {SWS}, 0 offen')
    e(f's_branch {LEND}')
    a.label('L_stageAB', pad=False)
    e(f'buffer_store_dwordx4 v[64:67], v20, {SWS}, s12 offen sc1')
    exec_if_wave('eq', 6, '0xffff', '0')
    e(f'buffer_store_dwordx2 v[58:59], v21, {SWS}, s12 offen sc1')
    e(f's_branch {LEND}')
    a.label('L_stageC', pad=False)
    gml = [([f'buffer_load_dwordx4 v[80:83], v23, {SWS}, 0 offen sc1', f'buffer_load_dwordx4 v[84:87], v23, {SWS}, 0 offen offset:16 sc1'], [80, 84])]
    gdat = [([f'buffer_load_dwordx4 v[{64+4*s}:{67+4*s}], v22, {SWS}, {sT(s)} offen sc1'], [64 + 4 * s]) for s in range(4)]
    for x in gml[0][0]: e(x)
    for l, q in gdat:
        for x in l: e(x)
    for q4 in range(4): e(f'ds_read_b128 v[{32+4*q4}:{35+4*q4}], v30 offset:{L_WOF + 1024*q4}')
    e('v_mov_b32 v98, s74')
    e('v_mov_b32 v99, s75')
    e('v_mov_b32 v102, s74')
    e('v_mov_b32 v103, s75')
    e(f's_mov_b64 s[{MASKS[0]}:{MASKS[0]+1}], -1')
    e('s_waitcnt vmcnt(4)')
    poll_check(gml, 'sent', [12, 13])
    e('s_cbranch_scc0 L_pollm_done')
    masked_poll('pollm', gml, 'sent', [12, 13], c.SLP1, ('v23',), c.RA1)
    e('v_max3_f32 v8, v80, v82, v84')
    e('v_max_f32 v8, v8, v86')
    for s in range(4): e(f'v_sub_f32 v{88+s}, v{80+2*s}, v8')
    for s in range(4): e(f'v_exp_f32 v{88+s}, v{88+s}')
    e('v_mul_f32 v9, v88, v81')
    for s in range(1, 4): e(f'v_fmac_f32 v9, v{88+s}, v{81+2*s}')
    e('v_rcp_f32 v9, v9')
    for s in range(4): e(f'v_mul_f32 v{88+s}, v{88+s}, v9')
    pipe_poll('poll1p', gdat, 'sent', [10, 11, 12, 13], c.PD1, max(1, c.RA1 * c.PD1 * c.RAM), 'L_poll1_done', c.PS1, pre=True)
    masked_poll('poll1', gdat, 'sent', [12, 13, 10, 11], c.SLP1, ('v22',), 0)
    stamp(8)
    for r in range(4): e(f'v_mul_f32 v{56+r}, v88, v{64+r}')
    for s in range(1, 4):
        for r in range(4): e(f'v_fmac_f32 v{56+r}, v{88+s}, v{64+4*s+r}')
    e('v_cvt_pk_bf16_f32 v60, v56, v57')
    e('v_cvt_pk_bf16_f32 v61, v58, v59')
    e(f'ds_write_b64 v24, v[60:61] offset:{L_BX}')
    e('s_waitcnt lgkmcnt(0)')
    e('s_barrier')
    for kk in range(4): e(f'ds_read_b64 v[{104+2*kk}:{105+2*kk}], v25 offset:{L_BX + kk*512}')
    for kk in range(4):
        e(f's_waitcnt lgkmcnt({3-kk})')
        for half in range(2):
            d = 48 + 4 * half; w = wreg(kk, half)
            cc = '0' if kk == 0 else f'v[{d}:{d+3}]'
            e(f'v_mfma_f32_16x16x16_bf16 v[{d}:{d+3}], v[{w}:{w+1}], v[{104+2*kk}:{105+2*kk}], {cc}')
    for r in range(4):
        e(f'v_add_f32_dpp v{96+(r>>1)*4+(r&1)}, v{52+r}, v{48+r} row_shl:8 row_mask:0xf bank_mask:0xf bound_ctrl:0')
    e('s_mov_b32 exec_lo, 0x00ff00ff')
    e('s_mov_b32 exec_hi, 0x00ff00ff')
    e(f'buffer_store_dwordx4 v[96:99], v26, {SWS}, 0 offen {c.H2ST}')
    e(f'buffer_store_dwordx4 v[100:103], v26, {SWS}, 0 offen offset:2048 {c.H2ST}')
    stamp(9)
    if c.STAMPS:
        a.label('L_dump', pad=True)
        stamp(11)
        if c.STAMPS == 3:
            e('s_getreg_b32 s86, hwreg(HW_REG_XCC_ID)')
            e('s_getreg_b32 s87, hwreg(HW_REG_HW_ID)')
        e('s_mov_b32 exec_lo, 1')
        e('s_mov_b32 exec_hi, 0')
        e('s_waitcnt lgkmcnt(0)')
        e('s_lshl_b32 s13, s2, 10')
        e('s_lshl_b32 s14, s3, 7')
        e('s_add_u32 s13, s13, s14')
        e(f's_add_u32 s13, s13, {STAMP}')
        e('v_mov_b32 v8, s13')
        for k2 in range(6):
            for j in range(4): e(f'v_mov_b32 v{64+j}, s{76+4*k2+j}')
            e(f'buffer_store_dwordx4 v[64:67], v8, {SWS}, 0 offen offset:{16*k2}')
            e('s_nop 1')
    a.label('L_end', pad=False)
    e('s_endpgm')
    return a

HEADER = """; GQA decode block (B=8, Hq=32, Hkv=8, Sk=4096, Dh=128, D=512): out = softmax((x wq) K^T / sqrt(Dh)) V wo
; @launch grid=(256,1,1) block=(512,1,1) lds=%d
;  64-bit launch tag derived from the epoch word the previous launch left); split partials go to the 32
;  multiplies by its 128x64 tile of wo; a last tagged exchange sums the 32 heads and stores bf16.
.amdgcn_target "amdgcn-amd-amdhsa--gfx950"
.text
"""
def footer(nm, sg):
    return f""".section .rodata,"a"
.p2align 6
.amdhsa_kernel {nm}
  .amdhsa_next_free_vgpr 256
  .amdhsa_next_free_sgpr {sg}
  .amdhsa_accum_offset 256
  .amdhsa_group_segment_fixed_size 0
  .amdhsa_kernarg_size 64
  .amdhsa_user_sgpr_count 2
  .amdhsa_user_sgpr_kernarg_segment_ptr 1
  .amdhsa_system_sgpr_workgroup_id_x 1
.end_amdhsa_kernel
"""
if __name__ == '__main__':
    c = Cfg()
    out = sys.argv[1]
    for kv in sys.argv[2:]:
        k, v = kv.split('=')
        setattr(c, k, int(v) if v.lstrip('-').isdigit() else v)
    for k in ('NT','WNT','LST','H2ST','H2LD'):
        v = getattr(c, k)
        setattr(c, k, '' if v == 'none' else v.replace('+', ' '))
    a = gen(c)
    open(out, 'w').write(HEADER % LDS_BYTES + a.text() + footer(c.NAME, 102))
    print('instr lines', len(a.lines), 'nops', a.nops, 'lds', LDS_BYTES)
```
